```python
import torch

def _softmax(x, axis=-1):
    return torch.softmax(x, dim=axis)
def _gelu(x):
    return torch.nn.functional.gelu(x, approximate="tanh")
def _silu(x):
    return torch.nn.functional.silu(x)
def _sigmoid(x):
    return torch.sigmoid(x)
def _layernorm(x, axis=-1, eps=1e-5):
    m = x.mean(dim=axis, keepdim=True)
    v = x.var(dim=axis, keepdim=True, unbiased=False)
    return (x - m) / torch.sqrt(v + eps)
def _scatter_add(tgt, idx, src, axis=0):
    return tgt.clone().index_add_(axis, idx, src)
def _segment_sum(src, seg, n):
    out = torch.zeros((n,) + src.shape[1:], dtype=src.dtype)
    return out.index_add_(0, seg, src)
def _pad(x, pw):
    flat = tuple(v for pair in reversed(pw) for v in pair)
    return torch.nn.functional.pad(x, flat)

kernel_name = 'standalone__dense_activation_gelu__prompt'

def setup_inputs():

    _w = (lambda a: (lambda t: t.to(torch.bfloat16) if t.is_floating_point() else t)(torch.as_tensor(a)))
    B, S, D, F = 1, 2048, 512, 1376
    return {
        "x": _w((lambda *s: torch.randn(*s, dtype=torch.bfloat16) * 0.05)(B, S, D)),
        "w1": _w((lambda *s: torch.randn(*s, dtype=torch.bfloat16) * 3.2)(D, F) * (D ** -0.5)),
        "b1": _w((lambda *s: torch.randn(*s, dtype=torch.bfloat16) * 3.2)(F) * 0.01),
        "w2": _w((lambda *s: torch.randn(*s, dtype=torch.bfloat16) * 0.05)(F, D) * (F ** -0.5)),
        "b2": _w((lambda *s: torch.randn(*s, dtype=torch.bfloat16) * 0.1)(D) * 0.01),
    }

def reference(x, w1, b1, w2, b2):
    h = torch.einsum("bsd,df->bsf", x, w1) + b1
    h = _gelu(h)
    return torch.einsum("bsf,fd->bsd", h, w2) + b2
```

```python
import sys, argparse, struct

KN = "standalone__dense_activation_gelu__prompt_kernel"

def f32bits(x): return struct.unpack("<I", struct.pack("<f", x))[0]

class Gen:
    def __init__(self, opt):
        self.o = opt
        self.L = []
        self.vm = []
        self.lg = []
        self.ev = set()
        self.stamps = []
        self.nlabel = 0
    def a(self, s): self.L.append("    " + s)
    def lab(self, s): self.L.append(s + ":")
    def c(self, s): self.L.append("    ; " + s)
    def vmem(self, s, tag): self.a(s); self.vm.append(tag)
    def lds(self, s, tag): self.a(s); self.lg.append(tag)
    def _cnt(self, lst, tags):
        idx = max(i for i, t in enumerate(lst) if t in tags)
        return len(lst) - 1 - idx
    def wait_vm(self, *tags):
        n = self._cnt(self.vm, tags); assert n <= 63, n
        self.a(f"s_waitcnt vmcnt({n})")
    def wait_lg(self, *tags):
        n = self._cnt(self.lg, tags)
        n = min(n, 15)
        self.a(f"s_waitcnt lgkmcnt({n})")
    def stamp(self, name):
        if not self.o.stamps: return
        r = 64 + 2*len(self.stamps)
        assert r + 1 <= 99
        self.a(f"s_memrealtime s[{r}:{r+1}]" if self.o.stamps == 2 else f"s_memtime s[{r}:{r+1}]")
        self.stamps.append((name, r))

W1ROW = 2752
HBLK = 2048
HUNITS = 48
FLAG_OFF = 0x600000
WS_REC = 0x700000
XBASE = 98304
OOB = 0x7ffffff0 & ~0xf

sRB, sJ, sW, sROT = 3, 4, 5, 6
sT0, sT1, sT2 = 7, 8, 9
sXB, sW1B, sW4K, sW3K = 10, 11, 12, 13
sXS, sW1S = 14, 15
sU, sW2B, sHLD0, sHLD1, sHST, sFST, sFLD, sCNT, sACL, sPCL = 16, 17, 18, 19, 20, 21, 22, 23, 24, 25
sTP0 = 26
sOUT = 29
sEX = 30
SX, SW1, SW2, SWS, SOUT, SDBG, SB1, SB2 = 32, 36, 40, 44, 48, 52, 56, 60
def srd(b): return f"s[{b}:{b+3}]"

vL, vXdE, vXdO, vW1d, vW2d = 1, 2, 3, 4, 7
vXa, vWa, vW2a = 8, 12, 15
vL16, vFO, vTAG, vZ, vPOLL, vT0, vT1 = 17, 18, 19, 20, 21, 22, 23
vC0, vC1, vONE = 24, 26, 28
vOUTO = 30
vRED = 31
ACC1 = 32
FR = 80
HL = 80
BFR = 128
GT = 160
ACC2 = 0
W2F = 64

def gen(opt):
    g = Gen(opt); a = g.a
    g.stamp("start")
    a("s_load_dwordx16 s[16:31], s[0:1], 0")
    a("s_memrealtime s[100:101]")
    a("s_cmp_ge_u32 s2, 256")
    a("s_cbranch_scc1 L_end")
    a(f"v_lshrrev_b32 v{vT0}, 6, v0")
    a(f"v_and_b32 v{vL}, 63, v0")
    a(f"s_and_b32 s{sRB}, s2, 7"); a(f"s_lshl_b32 s{sRB}, s{sRB}, 1"); a(f"s_lshr_b32 s{sT0}, s2, 7"); a(f"s_add_u32 s{sRB}, s{sRB}, s{sT0}")
    a(f"v_readfirstlane_b32 s{sW}, v{vT0}")
    a(f"s_lshr_b32 s{sJ}, s2, 3"); a(f"s_and_b32 s{sJ}, s{sJ}, 15")
    a(f"s_lshl_b32 s{sT0}, s{sT0}, 2"); a(f"s_add_u32 s{sROT}, s{sJ}, s{sT0}"); a(f"s_and_b32 s{sT0}, s2, 7"); a(f"s_add_u32 s{sROT}, s{sROT}, s{sT0}")
    if opt.norot: a(f"s_mov_b32 s{sROT}, 0")
    a(f"s_lshl_b32 s{sW4K}, s{sW}, 12"); a(f"s_mul_i32 s{sW3K}, s{sW}, 3072")
    a(f"s_lshl_b32 s{sXB}, s{sRB}, 17"); a(f"s_lshl_b32 s{sT0}, s{sW}, 15"); a(f"s_add_u32 s{sXB}, s{sXB}, s{sT0}")
    a(f"s_mul_i32 s{sW1B}, s{sJ}, 192"); a(f"s_mul_i32 s{sT0}, s{sW}, {16*W1ROW}"); a(f"s_add_u32 s{sW1B}, s{sW1B}, s{sT0}")
    a(f"v_lshrrev_b32 v{vT0}, 3, v{vL}")
    a(f"v_and_b32 v{vT1}, 7, v{vL}")
    a(f"v_lshrrev_b32 v{vXdO}, 1, v{vT0}")
    a(f"v_xor_b32 v{vXdO}, v{vXdO}, v{vT1}")
    a(f"v_lshlrev_b32 v{vXdO}, 4, v{vXdO}")
    a(f"v_lshl_add_u32 v{vXdE}, v{vT0}, 10, v{vXdO}")
    a(f"v_xor_b32 v{vXdO}, 64, v{vXdE}")
    a(f"v_lshlrev_b32 v{vW2d}, 1, v{vT0}"); a(f"v_and_b32 v{vW2d}, 4, v{vW2d}"); a(f"v_xor_b32 v{vW2d}, v{vW2d}, v{vT1}")
    a(f"v_lshlrev_b32 v{vW2d}, 4, v{vW2d}"); a(f"v_lshl_add_u32 v{vW2d}, v{vT0}, 10, v{vW2d}")
    for q in range(3):
        a(f"v_add_u32 v{vT0}, {64*q}, v{vL}")
        a(f"v_mul_u32_u24 v{vT1}, 0x5556, v{vT0}"); a(f"v_lshrrev_b32 v{vT1}, 18, v{vT1}")
        a(f"v_mul_u32_u24 v{vW1d+q}, {W1ROW - 192}, v{vT1}")
        a(f"v_lshl_add_u32 v{vW1d+q}, v{vT0}, 4, v{vW1d+q}")
    a(f"v_lshlrev_b32 v{vL16}, 4, v{vL}")
    a(f"v_mov_b32 v{vZ}, 0")
    a(f"v_lshlrev_b32 v{vT0}, 1, v{vL}")
    a(f"v_mov_b32 v{vT1}, 0x7ffffff0")
    a(f"v_cmp_gt_u32 vcc, 32, v{vL}")
    a(f"s_and_b32 s{sT0}, s{sRB}, 1"); a(f"s_lshl_b32 s{sT0}, s{sT0}, 1")
    a(f"v_cndmask_b32 v{vPOLL}, v{vT1}, v{vT0}, vcc")
    a("s_waitcnt lgkmcnt(0)")
    def mk(b, p, n):
        a(f"s_mov_b32 s{b}, s{p}"); a(f"s_and_b32 s{b+1}, s{p+1}, 0xffff"); a(f"s_mov_b32 s{b+2}, {n}"); a(f"s_mov_b32 s{b+3}, 0x20000")
    mk(SX, 16, 2097152); mk(SW1, 18, 1409024)
    g.stamp("karg")
    curk = {"x": None, "w": None}
    def stage_soff(kind, s):
        if curk[kind] == s: return
        curk[kind] = s
        a(f"s_add_u32 s{sT1}, s{sROT}, {s}"); a(f"s_and_b32 s{sT1}, s{sT1}, 7")
        if kind == "x":
            a(f"s_lshl_b32 s{sT1}, s{sT1}, 7"); a(f"s_add_u32 s{sXS}, s{sXB}, s{sT1}")
        else:
            a(f"s_mul_i32 s{sT1}, s{sT1}, {64*W1ROW}"); a(f"s_add_u32 s{sW1S}, s{sW1B}, s{sT1}")
    def px(s, p):
        if s >= 4: assert ("xfree", s-4) in g.ev, ("x", s)
        stage_soff("x", s)
        a(f"s_add_u32 m0, s{sW4K}, {XBASE + (s&3)*16384 + p*1024}")
        a(f"s_add_u32 s{sT2}, s{sXS}, {p*8192}")
        g.vmem(f"buffer_load_dwordx4 v{vXdO if p&1 else vXdE}, {srd(SX)}, s{sT2} offen lds", ("x", s))
    def pw(s, q):
        stage_soff("w", s)
        a(f"s_add_u32 m0, s{sW3K}, {s*12288 + q*1024}")
        a("s_nop 0")
        g.vmem(f"buffer_load_dwordx4 v{vW1d+q}, {srd(SW1)}, s{sW1S} offen lds", ("w", s))
    def w2slot(pi):
        if pi < 4: return pi*16384
        if pi < 8: return XBASE + (pi-4)*16384
        if pi < 10: return 65536 + (pi-8)*16384
        return 0
    def w2pre(pi):
        if pi < 4: return ("bar", [3, 4, 5, 7][pi])
        if pi < 8: return ("xfree", pi)
        if pi < 10: return ("bar", 8)
        return ("w2read", 0)
    def p2(pi, q):
        assert w2pre(pi) in g.ev, ("w2", pi, w2pre(pi))
        if q == 0:
            if pi > 0:
                a(f"s_add_u32 s{sU}, s{sU}, 12"); a(f"s_sub_u32 s{sT1}, s{sU}, 43"); a(f"s_cmp_ge_u32 s{sU}, 43"); a(f"s_cselect_b32 s{sU}, s{sT1}, s{sU}")
            a(f"s_lshl_b32 s{sXS}, s{sU}, 15"); a(f"s_add_u32 s{sXS}, s{sXS}, s{sW2B}")
            if pi == 10:
                a(f"s_cmp_eq_u32 s{sW}, 3"); a(f"s_cselect_b32 s{sT1}, 0x40000000, 0"); a(f"v_add_u32 v{vW2d}, s{sT1}, v{vW2d}")
        a(f"s_add_u32 m0, s{sW4K}, {w2slot(pi) + q*1024}")
        a(f"s_add_u32 s{sT2}, s{sXS}, {q*8192}")
        g.vmem(f"buffer_load_dwordx4 v{vW2d}, {srd(SW2)}, s{sT2} offen lds", ("w2", pi))
    Q = []
    for s in range(8):
        if opt.order == "xw":
            Q += [(px, s, p) for p in range(4)] + [(pw, s, q) for q in range(3)]
        else:
            Q += [(pw, s, q) for q in range(3)] + [(px, s, p) for p in range(4)]
    for pi in range(11): Q += [(p2, pi, q) for q in range(4)]
    qi = [0]
    def ready(it):
        f, s, p = it
        if f is px: return s < 4 or ("xfree", s-4) in g.ev
        if f is pw: return True
        return w2pre(s) in g.ev
    def pump(n):
        while n > 0 and qi[0] < len(Q) and ready(Q[qi[0]]):
            f, s, p = Q[qi[0]]; f(s, p); qi[0] += 1; n -= 1
    pump(7)
    mk(SW2, 22, 1409024); mk(SWS, 30, WS_REC); mk(SOUT, 26, 2097152); mk(SDBG, 28, 256); mk(SB1, 20, 2752); mk(SB2, 24, 1024)
    a(f"s_lshr_b32 s{sT1}, s{sW}, 1"); a(f"s_add_u32 s{sPCL}, s{sT0}, s{sT1}"); a(f"s_cmp_eq_u32 s{sPCL}, 3"); a(f"s_cselect_b32 s{sPCL}, 0, s{sPCL}")
    a(f"s_lshr_b32 s{sT1}, s{sJ}, 3"); a(f"s_add_u32 s{sACL}, s{sT0}, s{sT1}"); a(f"s_cmp_eq_u32 s{sACL}, 3"); a(f"s_cselect_b32 s{sACL}, 0, s{sACL}")
    if opt.nocls:
        a(f"s_mov_b32 s{sPCL}, 0"); a(f"s_mov_b32 s{sACL}, 0")
    a(f"s_mov_b32 s{sTP0}, s{sPCL}")
    for p in (1, 2):
        a(f"s_sub_u32 s{sTP0+p}, s{sTP0+p-1}, 1"); a(f"s_cmp_eq_u32 s{sTP0+p-1}, 0"); a(f"s_cselect_b32 s{sTP0+p}, 2, s{sTP0+p}")
    for p in range(3):
        a(f"s_mul_i32 s{sT1}, s{sJ}, 192"); a(f"s_lshl_b32 s{sT2}, s{sTP0+p}, 6"); a(f"s_add_u32 s{sT1}, s{sT1}, s{sT2}")
        a(f"v_add_u32 v{vT0}, s{sT1}, v{vPOLL}")
        g.vmem(f"buffer_load_ushort v{BFR+4*p}, v{vT0}, {srd(SB1)}, 0 offen", "b1")
    a(f"s_and_b32 s{sT1}, s{sJ}, 7"); a(f"s_lshl_b32 s{sW2B}, s{sT1}, 7"); a(f"s_and_b32 s{sT2}, s{sW}, 1"); a(f"s_lshl_b32 s{sT2}, s{sT2}, 6"); a(f"s_add_u32 s{sT1}, s{sW2B}, s{sT2}")
    g.vmem(f"buffer_load_ushort v{BFR+12}, v{vPOLL}, {srd(SB2)}, s{sT1} offen", "b2")
    a(f"s_lshl_b32 s{sOUT}, s{sRB}, 17"); a(f"s_add_u32 s{sOUT}, s{sOUT}, s{sT1}")
    a(f"s_lshr_b32 s{sT1}, s{sJ}, 3"); a(f"s_lshl_b32 s{sT1}, s{sT1}, 16"); a(f"s_add_u32 s{sOUT}, s{sOUT}, s{sT1}")
    a(f"s_lshr_b32 s{sT1}, s{sW}, 1"); a(f"s_lshl_b32 s{sT1}, s{sT1}, 15"); a(f"s_add_u32 s{sOUT}, s{sOUT}, s{sT1}")
    a(f"s_or_b32 s{sT1}, s{sJ}, s{sW}"); a(f"s_cmp_lg_u32 s{sT1}, 0"); a(f"s_cselect_b32 s{sT1}, 0x7ffffff0, 0"); a(f"v_mov_b32 v{vT0}, s{sT1}")
    a(f"s_or_b32 s{sT1}, s100, 1"); a(f"v_mov_b32 v{vTAG}, s{sT1}"); a(f"s_lshl_b32 s{sT2}, s{sRB}, 2")
    a("s_mov_b64 exec, 1")
    g.vmem(f"buffer_store_dword v{vTAG}, v{vT0}, {srd(SDBG)}, s{sT2} offen sc0 sc1", "tagst")
    a("s_mov_b64 exec, -1")
    pump(opt.init - 7)
    g.stamp("issued0")
    a(f"v_and_b32 v{vT0}, 31, v{vL}"); a(f"v_lshrrev_b32 v{vT1}, 5, v{vL}")
    a(f"v_lshrrev_b32 v{vXa}, 1, v{vT0}"); a(f"v_and_b32 v{vXa}, 7, v{vXa}"); a(f"v_xor_b32 v{vXa}, v{vXa}, v{vT1}"); a(f"v_lshlrev_b32 v{vXa}, 4, v{vXa}")
    a(f"v_lshl_add_u32 v{vXa}, v{vT0}, 7, v{vXa}")
    a(f"s_add_u32 s{sT1}, s{sW4K}, {XBASE}"); a(f"v_add_u32 v{vXa}, s{sT1}, v{vXa}")
    for ks in range(1, 4): a(f"v_xor_b32 v{vXa+ks}, {32*ks}, v{vXa}")
    a(f"v_lshlrev_b32 v{vOUTO}, 10, v{vT0}"); a(f"v_lshl_add_u32 v{vOUTO}, v{vT1}, 4, v{vOUTO}")
    a(f"v_bfe_u32 v{vT0}, v{vL}, 4, 1"); a(f"v_lshlrev_b32 v{vT0}, 5, v{vT0}"); a(f"v_and_b32 v{vRED}, 3, v{vL}"); a(f"v_lshl_add_u32 v{vT0}, v{vRED}, 3, v{vT0}")
    a(f"v_bfe_u32 v{vRED}, v{vL}, 2, 2")
    a(f"v_lshl_add_u32 v{vWa}, v{vT1}, 3, v{vRED}"); a(f"v_mul_u32_u24 v{vWa}, 192, v{vWa}"); a(f"v_add_u32 v{vWa}, v{vWa}, v{vT0}")
    for p in (2, 1, 0):
        a(f"s_lshl_b32 s{sT1}, s{sTP0+p}, 6"); a(f"v_add_u32 v{vWa+p}, s{sT1}, v{vWa}")
    a(f"v_lshl_add_u32 v{vW2a}, v{vT1}, 2, v{vRED}"); a(f"v_lshl_add_u32 v{vW2a}, v{vW2a}, 7, v{vT0}")
    a(f"v_lshrrev_b32 v{vRED}, 1, v{vRED}"); a(f"s_and_b32 s{sT1}, s{sW}, 1"); a(f"v_xor_b32 v{vRED}, s{sT1}, v{vRED}")
    a(f"v_lshl_add_u32 v{vW2a}, v{vRED}, 6, v{vW2a}"); a(f"v_add_u32 v{vW2a}, s{sW4K}, v{vW2a}")
    a(f"v_xor_b32 v{vW2a+1}, 64, v{vW2a}")
    c0 = -2.0*0.7978845608028654*1.4426950408889634; c1 = c0*0.044715
    for r, v in ((vC0, f32bits(c0)), (vC1, f32bits(c1)), (vONE, 0x3f800000)):
        a(f"v_mov_b32 v{r}, 0x{v:08x}"); a(f"v_mov_b32 v{r+1}, 0x{v:08x}")
    for p in range(5):
        for k in range(1, 4): a(f"v_mov_b32 v{BFR+4*p+k}, 0")
    a(f"v_mov_b32 v{vT0}, 0x3f80"); a(f"v_cmp_gt_u32 vcc, 32, v{vL}"); a("s_nop 1"); a(f"v_cndmask_b32 v{BFR+16}, 0, v{vT0}, vcc")
    a(f"s_mul_i32 s{sU}, s{sW}, 3"); a(f"s_add_u32 s{sU}, s{sU}, s{sACL}")
    a(f"s_lshl_b32 s{sT0}, s{sRB}, 2"); a(f"s_lshr_b32 s{sT1}, s{sJ}, 3"); a(f"s_lshl_b32 s{sT1}, s{sT1}, 1"); a(f"s_add_u32 s{sT0}, s{sT0}, s{sT1}")
    a(f"s_lshr_b32 s{sT1}, s{sW}, 1"); a(f"s_add_u32 s{sT2}, s{sT0}, s{sT1}"); a(f"s_mul_i32 s{sHLD0}, s{sT2}, {HUNITS*HBLK}")
    a(f"s_xor_b32 s{sT2}, s{sT2}, 1"); a(f"s_mul_i32 s{sHLD1}, s{sT2}, {HUNITS*HBLK}")
    FS = opt.fstride
    a(f"s_mul_i32 s{sFLD}, s{sT0}, {HUNITS*FS}"); a(f"s_add_u32 s{sFLD}, s{sFLD}, {FLAG_OFF}")
    a(f"s_lshl_b32 s{sT0}, s{sRB}, 2"); a(f"s_add_u32 s{sT0}, s{sT0}, s{sW}"); a(f"s_mul_i32 s{sT0}, s{sT0}, {HUNITS}"); a(f"s_mul_i32 s{sT1}, s{sJ}, 3"); a(f"s_add_u32 s{sT0}, s{sT0}, s{sT1}")
    a(f"s_lshl_b32 s{sHST}, s{sT0}, 11")
    a(f"s_mul_i32 s{sFST}, s{sT0}, {FS}"); a(f"s_add_u32 s{sFST}, s{sFST}, {FLAG_OFF}")
    a(f"v_lshrrev_b32 v{vT0}, 1, v{vL}"); a(f"v_mul_u32_u24 v{vT0}, 12, v{vT0}"); a(f"v_add_u32 v{vT0}, s{sU}, v{vT0}")
    a(f"v_mul_u32_u24 v{vT1}, 1525, v{vT0}"); a(f"v_lshrrev_b32 v{vT1}, 16, v{vT1}")
    a(f"v_mul_u32_u24 v{vT1}, 43, v{vT1}"); a(f"v_sub_u32 v{vT0}, v{vT0}, v{vT1}")
    a(f"v_and_b32 v{vT1}, 1, v{vL}"); a(f"v_mul_u32_u24 v{vT1}, 48, v{vT1}"); a(f"v_add_u32 v{vT0}, v{vT0}, v{vT1}")
    a(f"v_mul_u32_u24 v{vT0}, {FS}, v{vT0}")
    a(f"v_mov_b32 v{vT1}, 0x7ffffff0"); a(f"v_cmp_gt_u32 vcc, 22, v{vL}"); a("s_nop 1"); a(f"v_cndmask_b32 v{vFO}, v{vT1}, v{vT0}, vcc")
    if opt.preflag:
        g.vmem(f"buffer_load_dword v{vPOLL}, v{vFO}, {srd(SWS)}, s{sFLD} offen sc1", "prepoll")

    def acc1(p): return f"v[{ACC1+16*p}:{ACC1+16*p+15}]"
    def acc2(q): return f"a[{ACC2+16*q}:{ACC2+16*q+15}]"
    g.wait_vm("b1", "b2")
    for p in range(3):
        a(f"v_mfma_f32_32x32x16_bf16 {acc1(p)}, v[{BFR+4*p}:{BFR+4*p+3}], v[{BFR+16}:{BFR+19}], 0")
    a(f"v_mfma_f32_32x32x16_bf16 {acc2(0)}, v[{BFR+12}:{BFR+15}], v[{BFR+16}:{BFR+19}], 0")

    def fx(k): return FR + 16*(k % 3)
    def fw(k, p): return FR + 16*(k % 3) + 4 + 4*p
    def reads(k, regx=None, regw=None):
        s, ks = divmod(k, 4)
        out = []
        rx = fx(k) if regx is None else regx
        out.append(lambda: g.lds(f"ds_read_b128 v[{rx}:{rx+3}], v{vXa+ks} offset:{(s&3)*16384}", ("fx", k)))
        for p in range(3):
            for half in range(2):
                rw = (fw(k, p) if regw is None else regw(p)) + 2*half
                off = ((s & 3)*64 + 16*ks + 4*half)*192
                out.append(lambda rw=rw, off=off, p=p: g.lds(f"ds_read_b64_tr_b16 v[{rw}:{rw+1}], v{vWa+p} offset:{off}", ("fw", k, p)))
        return out
    def barrier(s):
        g.wait_vm(("x", s), ("w", s))
        a("s_barrier")
        g.ev.add(("bar", s))
        if s == 4:
            for p in range(3): a(f"v_add_u32 v{vWa+p}, {4*64*192}, v{vWa+p}")
    def mf1(k, p, rw=None, rx=None):
        rw = fw(k, p) if rw is None else rw; rx = fx(k) if rx is None else rx
        a(f"v_mfma_f32_32x32x16_bf16 {acc1(p)}, v[{rw}:{rw+3}], v[{rx}:{rx+3}], {acc1(p)}")
    barrier(0)
    g.stamp("B0")
    for t in reads(0) + reads(1): t()
    NK = 28
    for k in range(NK):
        s, ks = divmod(k, 4)
        nxt = []
        if k + 2 < NK:
            if (k+2) % 4 == 0: barrier((k+2)//4)
            nxt = reads(k+2)
        g.wait_lg(("fx", k), ("fw", k, 0))
        if ks == 3: g.ev.add(("xfree", s))
        mf1(k, 0)
        for t in nxt[:3]: t()
        pump(opt.pump[ks] // 2)
        g.wait_lg(("fw", k, 1))
        mf1(k, 1)
        for t in nxt[3:5]: t()
        pump(opt.pump[ks] - opt.pump[ks] // 2)
        g.wait_lg(("fw", k, 2))
        mf1(k, 2)
        for t in nxt[5:]: t()
        if k == 16:
            a(f"s_lshl_b32 s{sT1}, s{sRB}, 2")
            g.vmem(f"buffer_load_dword v{vTAG}, v{vZ}, {srd(SDBG)}, s{sT1} offen sc1", "tag")
    LX = 176; LW = 192
    barrier(7)
    g.stamp("B7")
    allr = {}
    for k in range(28, 32):
        allr[k] = reads(k, regx=LX + 4*(k-28), regw=lambda p, k=k: LW + 16*p + 4*(k-28))
    for k in range(28, 32):
        allr[k][0](); allr[k][1](); allr[k][2]()
    later = []
    for p in (1, 2):
        for k in range(28, 32): later += [allr[k][1+2*p], allr[k][2+2*p]]
    for k in range(28, 32):
        g.wait_lg(("fx", k), ("fw", k, 0))
        mf1(k, 0, LW + 4*(k-28), LX + 4*(k-28))
        for t in later[:3]: t()
        later = later[3:]
    g.ev.add(("xfree", 7))
    for t in later: t()
    pump(2)
    for p in (1, 2):
        for k in range(28, 32):
            g.wait_lg(("fw", k, p))
            mf1(k, p, LW + 16*p + 4*(k-28), LX + 4*(k-28))
            pump(1)
    a("s_barrier"); g.ev.add(("bar", 8))
    g.stamp("G1done")
    def gelu(p):
        A = ACC1 + 16*p
        T = GT
        D = 96 + 8*p
        for h in range(0, 16, 4):
            x0, x1 = A+h, A+h+2
            t0, t1 = T, T+2
            a(f"v_pk_mul_f32 v[{t0}:{t0+1}], v[{x0}:{x0+1}], v[{x0}:{x0+1}]")
            a(f"v_pk_mul_f32 v[{t1}:{t1+1}], v[{x1}:{x1+1}], v[{x1}:{x1+1}]")
            a(f"v_pk_fma_f32 v[{t0}:{t0+1}], v[{t0}:{t0+1}], v[{vC1}:{vC1+1}], v[{vC0}:{vC0+1}]")
            a(f"v_pk_fma_f32 v[{t1}:{t1+1}], v[{t1}:{t1+1}], v[{vC1}:{vC1+1}], v[{vC0}:{vC0+1}]")
            a(f"v_pk_mul_f32 v[{t0}:{t0+1}], v[{t0}:{t0+1}], v[{x0}:{x0+1}]")
            a(f"v_pk_mul_f32 v[{t1}:{t1+1}], v[{t1}:{t1+1}], v[{x1}:{x1+1}]")
            for i in range(4): a(f"v_exp_f32 v{T+i}, v{T+i}")
            pump(1)
            a(f"v_pk_add_f32 v[{t0}:{t0+1}], v[{t0}:{t0+1}], v[{vONE}:{vONE+1}]")
            a(f"v_pk_add_f32 v[{t1}:{t1+1}], v[{t1}:{t1+1}], v[{vONE}:{vONE+1}]")
            for i in range(4): a(f"v_rcp_f32 v{T+i}, v{T+i}")
            pump(1)
            a(f"v_pk_mul_f32 v[{t0}:{t0+1}], v[{t0}:{t0+1}], v[{x0}:{x0+1}]")
            a(f"v_pk_mul_f32 v[{t1}:{t1+1}], v[{t1}:{t1+1}], v[{x1}:{x1+1}]")
            a(f"v_cvt_pk_bf16_f32 v{D+h//2}, v{t0}, v{t0+1}")
            a(f"v_cvt_pk_bf16_f32 v{D+h//2+1}, v{t1}, v{t1+1}")
            if h in (4, 12):
                ks = h // 8
                if ks == 0:
                    a(f"s_lshl_b32 s{sT0}, s{sTP0+p}, 11"); a(f"s_add_u32 s{sT0}, s{sT0}, s{sHST}")
                g.vmem(f"buffer_store_dwordx4 v[{D+4*ks}:{D+4*ks+3}], v{vL16}, {srd(SWS)}, s{sT0} offen offset:{ks*1024} sc1", ("hst", p))
    a("s_nop 0")
    for p in range(3):
        gelu(p)
    g.stamp("gelu")
    w2bump = [0]
    def w2reads(pi):
        base = w2slot(pi)
        want = base & ~0xffff
        if want != w2bump[0]:
            d = (want - w2bump[0]) & 0xffffffff
            a(f"v_add_u32 v{vW2a}, 0x{d:x}, v{vW2a}"); a(f"v_add_u32 v{vW2a+1}, 0x{d:x}, v{vW2a+1}")
            w2bump[0] = want
        g.wait_vm(("w2", pi))
        for ks in range(2):
            for nt in range(2):
                for half in range(2):
                    r = W2F + 16*pi + 8*ks + 4*nt + 2*half
                    g.lds(f"ds_read_b64_tr_b16 a[{r}:{r+1}], v{vW2a+nt} offset:{(base & 0xffff) + (16*ks + 8*half)*128}", ("w2f", pi))
    pump(100)
    w2reads(0)
    g.wait_lg(("w2f", 0)); g.ev.add(("w2read", 0))
    pump(100)
    assert qi[0] == len(Q)
    g.wait_vm("tag")
    a(f"v_cmp_ne_u32 vcc, 0, v{vTAG}"); a("s_cbranch_vccnz L_tagok")
    a(f"s_mov_b32 s{sCNT}, 0"); a(f"s_lshl_b32 s{sT1}, s{sRB}, 2")
    g.lab("L_tagloop")
    a(f"buffer_load_dword v{vTAG}, v{vZ}, {srd(SDBG)}, s{sT1} offen sc1")
    a("s_waitcnt vmcnt(0)")
    a(f"v_cmp_ne_u32 vcc, 0, v{vTAG}"); a("s_cbranch_vccnz L_tagok")
    a("s_sleep 2")
    a(f"s_add_u32 s{sCNT}, s{sCNT}, 1"); a(f"s_cmp_lt_u32 s{sCNT}, {opt.spin}"); a("s_cbranch_scc1 L_tagloop")
    g.lab("L_tagok")
    for p in range(3):
        a(f"s_mul_i32 s{sT0}, s{sTP0+p}, {FS}"); a(f"s_add_u32 s{sT0}, s{sT0}, s{sFST}")
        g.wait_vm(("hst", p))
        a("s_mov_b64 exec, 1")
        g.vmem(f"buffer_store_dword v{vTAG}, v{vZ}, {srd(SWS)}, s{sT0} offen sc1", ("flag", p))
        a("s_mov_b64 exec, -1")
        for pi in ((1, 2, 3), (4, 5), (6, 7))[p]: w2reads(pi)
    g.stamp("flags")
    for pi in (8, 9, 10): w2reads(pi)
    a(f"s_mul_i32 s{sU}, s{sW}, 3"); a(f"s_add_u32 s{sU}, s{sU}, s{sACL}")
    def hreg(pi, mt, ks): return HL + 16*pi + 8*mt + 4*ks
    def hloads(pi):
        if pi > 0:
            a(f"s_add_u32 s{sU}, s{sU}, 12"); a(f"s_sub_u32 s{sT1}, s{sU}, 43"); a(f"s_cmp_ge_u32 s{sU}, 43"); a(f"s_cselect_b32 s{sU}, s{sT1}, s{sU}")
        a(f"s_lshl_b32 s{sT0}, s{sU}, 11")
        vo = vL16
        if pi == 10:
            a(f"s_cmp_eq_u32 s{sW}, 3"); a(f"s_cselect_b32 s{sT1}, 0x40000000, 0"); a(f"v_add_u32 v{vT0}, s{sT1}, v{vL16}")
            vo = vT0
        a(f"s_add_u32 s{sT1}, s{sT0}, s{sHLD0}"); a(f"s_add_u32 s{sT2}, s{sT0}, s{sHLD1}")
        for ks in range(2):
            for mt in range(2):
                r = hreg(pi, mt, ks)
                g.vmem(f"buffer_load_dwordx4 v[{r}:{r+3}], v{vo}, {srd(SWS)}, s{sT1 if mt == 0 else sT2} offen offset:{ks*1024} sc1", ("h", pi, ks))
    def poll(tag): g.vmem(f"buffer_load_dword v{vPOLL}, v{vFO}, {srd(SWS)}, s{sFLD} offen sc1", tag)
    def gate(n, mask, first):
        lo, ok = f"L_gate{n}", f"L_gate{n}ok"
        a(f"s_mov_b32 s{sCNT}, 0")
        if first is not None:
            g.wait_vm(first)
            a(f"v_cmp_ne_u32 vcc, v{vTAG}, v{vPOLL}"); a("s_nop 1"); a(f"s_and_b32 s{sT0}, vcc_lo, 0x{mask:x}"); a(f"s_cbranch_scc0 {ok}")
        g.lab(lo)
        a(f"buffer_load_dword v{vPOLL}, v{vFO}, {srd(SWS)}, s{sFLD} offen sc1")
        a("s_waitcnt vmcnt(0)")
        a(f"v_cmp_ne_u32 vcc, v{vTAG}, v{vPOLL}"); a("s_nop 1"); a(f"s_and_b32 s{sT0}, vcc_lo, 0x{mask:x}"); a(f"s_cbranch_scc0 {ok}")
        a(f"s_add_u32 s{sCNT}, s{sCNT}, 1"); a(f"s_cmp_lt_u32 s{sCNT}, {opt.spin}"); a(f"s_cbranch_scc1 {lo}")
        g.lab(ok)
    started = set([0])
    def mf2(pi):
        for ks in range(2):
            g.wait_vm(("h", pi, ks))
            for mt in range(2):
                for nt in range(2):
                    q = 2*mt + nt
                    w = W2F + 16*pi + 8*ks + 4*nt; h = hreg(pi, mt, ks)
                    c = acc2(q) if q in started else "0"
                    started.add(q)
                    a(f"v_mfma_f32_32x32x16_bf16 {acc2(q)}, a[{w}:{w+3}], v[{h}:{h+3}], {c}")
    gate(0, 0xff, None)
    g.stamp("gate0")
    poll("pollB")
    for pi in range(4): hloads(pi)
    gate(1, 0xff00, "pollB")
    poll("pollC")
    for pi in range(4, 8): hloads(pi)
    g.stamp("gate1")
    a("s_waitcnt lgkmcnt(0)")
    for pi in range(4): mf2(pi)
    gate(2, 0x3f0000, "pollC")
    for pi in range(8, 11): hloads(pi)
    g.stamp("gate2")
    for pi in range(4, 11): mf2(pi)
    g.stamp("G2done")
    a(f"v_add_u32 v{vRED}, s{sW4K}, v{vL16}")
    a("s_nop 7"); a("s_nop 3")
    for q in (1, 2, 3):
        for i in range(4):
            r = ACC2 + 16*q + 4*i
            g.lds(f"ds_write_b128 v{vRED}, a[{r}:{r+3}] offset:{q*16384 + i*1024}", "red")
    for i in range(16): a(f"v_accvgpr_read_b32 v{32+i}, a{ACC2+i}")
    for q in (1, 2, 3): a(f"v_xor_b32 v{8+q}, {q*4096}, v{vRED}")
    a("s_waitcnt lgkmcnt(0)")
    a("s_barrier")
    for i in range(4):
        for q in (1, 2, 3):
            r = 48 + 16*(q-1) + 4*i
            g.lds(f"ds_read_b128 v[{r}:{r+3}], v{8+q} offset:{q*16384 + i*1024}", ("rr", i))
    for i in range(4):
        g.wait_lg(("rr", i))
        for h in (0, 2):
            d = 32 + 4*i + h
            a(f"v_pk_add_f32 v[{d}:{d+1}], v[{d}:{d+1}], v[{d+16}:{d+17}]")
            a(f"v_pk_add_f32 v[{d+32}:{d+33}], v[{d+32}:{d+33}], v[{d+48}:{d+49}]")
        for h in (0, 2):
            d = 32 + 4*i + h
            a(f"v_pk_add_f32 v[{d}:{d+1}], v[{d}:{d+1}], v[{d+32}:{d+33}]")
        for h in (0, 2):
            d = 32 + 4*i + h
            a(f"v_cvt_pk_bf16_f32 v{100 + 2*i + h//2}, v{d}, v{d+1}")
        if i & 1:
            b = 100 + 2*(i-1)
            a("s_nop 1")
            a(f"v_permlane32_swap_b32 v{b}, v{b+2}"); a(f"v_permlane32_swap_b32 v{b+1}, v{b+3}")
            a(f"buffer_store_dwordx4 v[{b}:{b+3}], v{vOUTO}, {srd(SOUT)}, s{sOUT} offen offset:{(i-1)*16} {opt.outflag}")
    g.stamp("end")
    if opt.stamps:
        a("s_waitcnt vmcnt(0)")
        g.stamp("end2")
        a("s_waitcnt lgkmcnt(0)")
        a(f"s_mov_b32 s{SWS+2}, 0x10000000")
        a(f"v_cmp_eq_u32 vcc, {opt.stampwave*64}, v0"); a(f"s_and_saveexec_b64 s[{sEX}:{sEX+1}], vcc"); a("s_cbranch_execz L_end")
        a(f"s_mul_i32 s{sT0}, s2, 128"); a(f"s_add_u32 s{sT0}, s{sT0}, 0x8000000")
        st = list(g.stamps)
        while len(st) < 16: st.append(st[0])
        for i, (nm, r) in enumerate(st):
            a(f"v_mov_b32 v4, s{r}"); a(f"v_mov_b32 v5, s{r+1}")
            a(f"buffer_store_dwordx2 v[4:5], v{vZ}, {srd(SWS)}, s{sT0} offen offset:{i*8}")
            a("s_nop 1")
        sys.stderr.write("stamps: " + " ".join(n for n, _ in g.stamps) + "\n")
    g.lab("L_end")
    hdr = open("standalone__dense_activation_gelu__prompt.s.ref").read().split("\n")
    hdr = [l for l in hdr if l.startswith(";") and "@launch" not in l]
    s = "\n".join(hdr) + f"""
; @launch grid=(256,1,1) block=(256,1,1) lds=163840
.amdgcn_target "amdgcn-amd-amdhsa--gfx950"
.text
.globl {KN}
.p2align 8
.type {KN},@function
{KN}:
""" + "\n".join(g.L) + f"""
    s_endpgm
.section .rodata,"a"
.p2align 6
.amdhsa_kernel {KN}
  .amdhsa_next_free_vgpr 496
  .amdhsa_next_free_sgpr 102
  .amdhsa_accum_offset 256
  .amdhsa_group_segment_fixed_size 0
  .amdhsa_kernarg_size 64
  .amdhsa_user_sgpr_count 2
  .amdhsa_user_sgpr_kernarg_segment_ptr 1
  .amdhsa_system_sgpr_workgroup_id_x 1
  .amdhsa_float_denorm_mode_32 3
.end_amdhsa_kernel
"""
    return s

if __name__ == "__main__":
    ap = argparse.ArgumentParser()
    ap.add_argument("-o", default="k.s")
    ap.add_argument("--stamps", type=int, default=0)
    ap.add_argument("--stampwave", type=int, default=0)
    ap.add_argument("--order", default="xw")
    ap.add_argument("--init", type=int, default=21)
    ap.add_argument("--pump", type=lambda s: [int(x) for x in s.split(",")], default=[2, 2, 2, 2])
    ap.add_argument("--fstride", type=int, default=128)
    ap.add_argument("--preflag", type=int, default=1)
    ap.add_argument("--norot", type=int, default=0)
    ap.add_argument("--nocls", type=int, default=0)
    ap.add_argument("--spin", type=int, default=20000)
    ap.add_argument("--outflag", default="")
    opt = ap.parse_args()
    open(opt.o, "w").write(gen(opt))
```

```python
import sys, argparse, struct

KN = "standalone__dense_activation_gelu__prompt_kernel"
def f32bits(x): return struct.unpack("<I", struct.pack("<f", x))[0]

class Gen:
    def __init__(self, opt):
        self.o = opt; self.L = []; self.vm = []; self.lg = []; self.stamps = {}; self.role = "c"
    def a(self, s): self.L.append("    " + s)
    def lab(self, s): self.L.append(s + ":")
    def vmem(self, s, tag): self.a(s); self.vm.append(tag)
    def lds(self, s, tag): self.a(s); self.lg.append(tag)
    def _cnt(self, lst, tags):
        idx = max(i for i, t in enumerate(lst) if t in tags)
        return len(lst) - 1 - idx
    def wait_vm(self, *tags): self.a(f"s_waitcnt vmcnt({min(self._cnt(self.vm, tags), 63)})")
    def wait_lg(self, *tags): self.a(f"s_waitcnt lgkmcnt({min(self._cnt(self.lg, tags), 15)})")
    def stamp(self, name):
        o = self.o
        if o.echo and name in o.echo and self.role in ("c", "both"):
            r = 96 + 2*o.echo.index(name)
            self.a(f"s_memrealtime s[{r}:{r+1}]")
        if not o.stamps: return
        want = "h" if o.stampwave >= 4 else "c"
        if self.role not in (want, "both"): return
        if name not in (o.onlyh if want == "h" else o.only): return
        r = STAMP0 + 2*len(self.stamps)
        assert r + 1 <= 101, "too many stamps"
        self.a(f"{'s_memtime' if o.stamps != 2 else 's_memrealtime'} s[{r}:{r+1}]")
        self.stamps[name] = r
        if o.stamps == 3:
            self.a(f"s_memrealtime s[{r+2}:{r+3}]"); self.stamps[name + "_r"] = r + 2

W1ROW = 2752
HUNITS = 48
FLAG_OFF = 0x600000
WS_REC = 0x700000
XBASE = 98304
OOB = 0x7ffffff0
BIG = 0x40000000

sRB1, sJL, sW, sROT = 3, 4, 5, 6
sT0, sT1, sT2 = 7, 8, 9
sW4K, sW3K, sXS, sW1S, sCNT, sOUT = 10, 11, 12, 13, 14, 15
S0, S1, S2, S3, S4 = 32, 36, 40, 44, 48
sNV, sU0, sRB2, sJ2 = 52, 53, 54, 55
sTP0 = 56; sUW = 59; sTM = 70; STAMP0 = 72
sHS = 26
def srd(b): return f"s[{b}:{b+3}]"

vL = 1
vT0, vT1, vL16, vZ = 2, 3, 4, 5
vXd, vW1d, vW2d = 8, 12, 16
vTAG, vTCH = 20, 21
vXa, vWa, vW2a = 8, 12, 6
vH0, vH1, vOUTO, vFZ = 20, 21, 22, 23
vC0, vC1, vONE = 24, 26, 28
vH0x, vH1x = 30, 31
vTG = 15
ACC1 = 32; FR = 80; LX = 128; LW = 144; BFR = 144
GT = 80; GD = 96; vST = 120
HL = 32; NHR = 6
WF = 128; NWF = 4
Q0 = 192

def gen(opt):
    g = Gen(opt); a = g.a
    g.role = "both"
    g.stamp("start")
    a("s_load_dwordx16 s[16:31], s[0:1], 0")
    a(f"s_memrealtime s[{sTM}:{sTM+1}]")
    a("s_cmp_ge_u32 s2, 256")
    a("s_cbranch_scc1 L_end")
    a(f"v_lshrrev_b32 v{vT0}, 6, v0")
    a(f"v_and_b32 v{vL}, 63, v0")
    a(f"s_and_b32 s{sT2}, s2, 1")
    a(f"v_readfirstlane_b32 s{sW}, v{vT0}")
    a(f"s_bfe_u32 s{sJL}, s2, 0x30003")
    a(f"s_lshr_b32 s{sT0}, s2, 6")
    a(f"s_bfe_u32 s{sT1}, s2, 0x20001")
    a(f"s_lshl_b32 s{sRB1}, s{sT1}, 2"); a(f"s_add_u32 s{sRB1}, s{sRB1}, s{sT0}")
    a(f"s_lshl_b32 s{sROT}, s{sT0}, 1"); a(f"s_add_u32 s{sROT}, s{sROT}, s{sJL}")
    a(f"s_mul_i32 s{sU0}, s{sT2}, 22"); a(f"s_mul_i32 s{sT1}, s{sJL}, 3"); a(f"s_add_u32 s{sU0}, s{sU0}, s{sT1}")
    if opt.bal: a(f"s_lshr_b32 s{sT0}, s{sT0}, 1"); a(f"s_xor_b32 s{sT2}, s{sT2}, s{sT0}")
    a(f"s_xor_b32 s{sT2}, s{sT2}, 1")
    a(f"s_cmp_eq_u32 s{sJL}, 7"); a(f"s_cselect_b32 s{sNV}, s{sT2}, 3"); a(f"s_cselect_b32 s{sU0}, 21, s{sU0}")
    a(f"s_and_b32 s{sRB2}, s2, 7"); a(f"s_lshl_b32 s{sRB2}, s{sRB2}, 1"); a(f"s_lshr_b32 s{sT1}, s2, 7"); a(f"s_add_u32 s{sRB2}, s{sRB2}, s{sT1}")
    a(f"s_bfe_u32 s{sJ2}, s2, 0x40003")
    a(f"v_lshlrev_b32 v{vL16}, 4, v{vL}")
    a(f"v_mov_b32 v{vZ}, 0")
    a(f"s_mov_b32 s{sT2}, s{sW}")
    a(f"s_and_b32 s{sW}, s{sW}, 3")
    a(f"s_lshl_b32 s{sW4K}, s{sW}, 12")
    a(f"s_cmp_lt_u32 s{sT2}, 4")
    a("s_cbranch_scc1 L_compute")

    def mk(b, p, n):
        a(f"s_mov_b32 s{b}, s{p}"); a(f"s_and_b32 s{b+1}, s{p+1}, 0xffff"); a(f"s_mov_b32 s{b+2}, {n}"); a(f"s_mov_b32 s{b+3}, 0x20000")
    def units():
        a(f"s_and_b32 s{sT0}, s{sRB2}, 1"); a(f"s_lshl_b32 s{sT0}, s{sT0}, 1")
        a(f"s_lshr_b32 s{sT1}, s{sJ2}, 3"); a(f"s_add_u32 s{sT2}, s{sT0}, s{sT1}"); a(f"s_cmp_eq_u32 s{sT2}, 3"); a(f"s_cselect_b32 s{sT2}, 0, s{sT2}")
        if opt.nocls: a(f"s_mov_b32 s{sT2}, 0")
        a(f"s_mul_i32 s{sT1}, s{sW}, 3"); a(f"s_add_u32 s{sT1}, s{sT1}, s{sT2}")
        if not opt.hrot:
            a(f"s_lshl_b32 s{sUW}, s{sT1}, 15")
            for pi in range(1, 11):
                a(f"s_add_u32 s{sUW+pi}, s{sUW+pi-1}, {12<<15}"); a(f"s_sub_u32 s{sT1}, s{sUW+pi}, {43<<15}"); a(f"s_cselect_b32 s{sUW+pi}, s{sUW+pi}, s{sT1}")
        else:
            a(f"s_lshl_b32 s{sT2}, s{sT1}, 15")
            for pi in range(11):
                if pi in (4, 8): a(f"s_add_u32 s{sT2}, s{sT2}, {5<<15}")
                if pi == 10: a(f"s_add_u32 s{sUW+pi}, s{sT2}, {24<<15}")
                else:
                    a(f"s_add_u32 s{sT1}, s{sJ2}, {pi}"); a(f"s_and_b32 s{sT1}, s{sT1}, {3 if pi < 8 else 1}")
                    a(f"s_mul_i32 s{sT1}, s{sT1}, {12<<15}"); a(f"s_add_u32 s{sUW+pi}, s{sT2}, s{sT1}")
                a(f"s_sub_u32 s{sT1}, s{sUW+pi}, {43<<15}"); a(f"s_cselect_b32 s{sUW+pi}, s{sUW+pi}, s{sT1}")
    def w2voff():
        a(f"v_lshrrev_b32 v{vT0}, 3, v{vL}"); a(f"v_and_b32 v{vT1}, 7, v{vL}")
        a(f"v_lshlrev_b32 v{vW2d}, 1, v{vT0}"); a(f"v_and_b32 v{vW2d}, 4, v{vW2d}"); a(f"v_xor_b32 v{vW2d}, v{vW2d}, v{vT1}")
        a(f"v_lshlrev_b32 v{vW2d}, 4, v{vW2d}"); a(f"v_lshl_add_u32 v{vW2d}, v{vT0}, 10, v{vW2d}")
        a(f"s_and_b32 s{sT1}, s{sJ2}, 7"); a(f"s_lshl_b32 s{sT1}, s{sT1}, 7"); a(f"v_add_u32 v{vW2d}, s{sT1}, v{vW2d}")
        for q in range(1, 4): a(f"v_add_u32 v{vW2d+q}, {q*7168}, v{vW2d}")
    def w2slot(pi):
        if pi < 4: return pi*16384
        if pi < 8: return XBASE + (pi-4)*16384
        if pi < 10: return 65536 + (pi-8)*16384
        return 0
    def dump_stamps(SWS_):
        a("s_waitcnt lgkmcnt(0)")
        a(f"s_mov_b32 s{SWS_+2}, 0x10000000")
        if opt.stampwave >= 0:
            a(f"v_cmp_eq_u32 vcc, {opt.stampwave*64}, v0"); a(f"s_and_saveexec_b64 s[16:17], vcc"); a("s_cbranch_execz L_end")
            a(f"s_mul_i32 s{sT0}, s2, 128"); a(f"s_add_u32 s{sT0}, s{sT0}, 0x8000000")
        else:
            a("s_mov_b64 exec, 1")
            a(f"s_lshl_b32 s{sT0}, s2, 2"); a(f"s_add_u32 s{sT0}, s{sT0}, s{sW}"); a(f"s_mul_i32 s{sT0}, s{sT0}, 128"); a(f"s_add_u32 s{sT0}, s{sT0}, 0x8000000")
        st = list(g.stamps.values())
        a(f"s_add_u32 s18, s{st[0]}, s{sCNT}"); a(f"s_addc_u32 s19, s{st[0]+1}, 0")
        while len(st) < 15: st.append(st[0])
        st.append(18)
        for i, r in enumerate(st):
            a(f"v_mov_b32 v2, s{r}"); a(f"v_mov_b32 v3, s{r+1}")
            a(f"buffer_store_dwordx2 v[2:3], v{vZ}, {srd(SWS_)}, s{sT0} offen offset:{i*8}")
            a("s_nop 1")

    g.role = "h"; g.vm = []; g.lg = []
    SX, SW1, SW2, SWS, SDBG = S0, S1, S2, S3, S4
    a("s_setprio 1")
    a(f"s_mul_i32 s{sW3K}, s{sW}, 3072")
    a(f"s_cmp_eq_u32 s{sNV}, 0"); a(f"s_cselect_b32 s{sT2}, 0x{BIG:x}, 0")
    a(f"s_lshl_b32 s{sT1}, s{sU0}, 6"); a(f"s_mul_i32 s{sT0}, s{sW}, {16*W1ROW}"); a(f"s_add_u32 s{sT1}, s{sT1}, s{sT0}")
    a(f"s_lshl_b32 s{sT0}, s{sNV}, 2")
    a(f"v_mov_b32 v{vTCH}, 0x{BIG:x}")
    for q in range(3):
        a(f"v_add_u32 v{vT0}, {64*q}, v{vL}")
        a(f"v_mul_u32_u24 v{vT1}, 0x5556, v{vT0}"); a(f"v_lshrrev_b32 v{vT1}, 18, v{vT1}")
        a(f"v_mul_u32_u24 v{vW1d+q}, {W1ROW - 192}, v{vT1}")
        a(f"v_mul_u32_u24 v{vT1}, 12, v{vT1}"); a(f"v_sub_u32 v{vT0}, v{vT0}, v{vT1}")
        a(f"v_cmp_gt_u32 vcc, s{sT0}, v{vT0}")
        a(f"v_add3_u32 v{vW1d+q}, v{vW1d+q}, v{vL16}, s{sT1}")
        a(f"s_nop 0")
        a(f"v_cndmask_b32 v{vW1d+q}, v{vTCH}, v{vW1d+q}, vcc")
    a(f"s_lshl_b32 s{sT1}, s{sRB1}, 17"); a(f"s_lshl_b32 s{sT0}, s{sW}, 15"); a(f"s_add_u32 s{sT1}, s{sT1}, s{sT0}"); a(f"s_add_u32 s{sT1}, s{sT1}, s{sT2}")
    a(f"v_lshrrev_b32 v{vT0}, 3, v{vL}"); a(f"v_and_b32 v{vT1}, 7, v{vL}")
    a(f"v_lshrrev_b32 v{vXd}, 1, v{vT0}"); a(f"v_xor_b32 v{vXd}, v{vXd}, v{vT1}"); a(f"v_lshlrev_b32 v{vXd}, 4, v{vXd}")
    a(f"v_lshl_add_u32 v{vXd}, v{vT0}, 10, v{vXd}"); a(f"v_add_u32 v{vXd}, s{sT1}, v{vXd}")
    a(f"v_xor_b32 v{vXd+1}, 64, v{vXd}"); a(f"v_add_u32 v{vXd+1}, {7168}, v{vXd+1}")
    a(f"v_add_u32 v{vXd+2}, {2*7168}, v{vXd}"); a(f"v_add_u32 v{vXd+3}, {2*7168}, v{vXd+1}")
    a("s_waitcnt lgkmcnt(0)")
    mk(SW1, 18, 1409024); mk(SX, 16, 2097152)
    g.stamp("karg")
    Q = []
    for s in range(8):
        Q += [("w", s, q) for q in range(3)] + [("x", s, p) for p in range(4)]
    for pi in opt.w2order: Q += [("2", pi, q) for q in range(4)]
    if opt.tq: Q = Q[:56] + [("t", 0, r) for r in range(opt.trows)] + Q[56:]
    pre2 = {0: 3, 1: 4, 2: 5, 3: 7, 4: 6, 5: 7, 6: 7, 7: 8, 8: 7, 9: 8}
    bars = set()
    def emit(it):
        k, s, p = it
        if k == "w":
            if p == 0:
                a(f"s_add_u32 m0, s{sW3K}, {s*12288}")
                a(f"s_add_u32 s{sT1}, s{sROT}, {s}"); a(f"s_and_b32 s{sT1}, s{sT1}, 7"); a(f"s_mul_i32 s{sW1S}, s{sT1}, {64*W1ROW}")
            g.vmem(f"buffer_load_dwordx4 v{vW1d+p}, {srd(SW1)}, s{sW1S} offen offset:{p*1024} lds", ("w", s))
        elif k == "x":
            assert s < 4 or (s-2) in bars, it
            if p == 0:
                a(f"s_add_u32 m0, s{sW4K}, {XBASE + (s & 3)*16384}")
                a(f"s_add_u32 s{sT1}, s{sROT}, {s}"); a(f"s_and_b32 s{sT1}, s{sT1}, 7"); a(f"s_lshl_b32 s{sXS}, s{sT1}, 7")
            g.vmem(f"buffer_load_dwordx4 v{vXd+p}, {srd(SX)}, s{sXS} offen offset:{p*1024} {opt.xflag} lds", ("x", s))
        elif k == "t":
            if p % 4 == 0: a(f"s_movk_i32 s25, {p*1024}")
            g.vmem(f"buffer_load_dwordx4 v[{32+4*p}:{35+4*p}], v{vTCH}, {srd(SW2)}, s25 offen offset:{(p%4)*1024}", "t")
        else:
            assert pre2[s] in bars, it
            if p == 0: a(f"s_add_u32 m0, s{sW4K}, {w2slot(s)}"); a("s_nop 0")
            g.vmem(f"buffer_load_dwordx4 v{vW2d+p}, {srd(SW2)}, s{sUW+s} offen offset:{p*1024} lds", ("2", s))
    jobs = {}
    def at(n, f): jobs.setdefault(n, []).append(f)
    def job_srds():
        mk(SW2, 22, 1409024); mk(SDBG, 28, 256)
        if opt.stamps: mk(SWS, 30, WS_REC); a(f"s_mov_b32 s{sCNT}, 0")
    def job_tagstore():
        a(f"s_lshr_b32 s{sT1}, s2, 3"); a(f"s_and_b32 s{sT2}, s2, 1"); a(f"s_or_b32 s{sT1}, s{sT1}, s{sT2}"); a(f"s_or_b32 s{sT1}, s{sT1}, s{sW}")
        a(f"s_cselect_b32 s{sT1}, 0x{OOB:x}, 0"); a(f"v_mov_b32 v{vT0}, s{sT1}")
        a(f"s_or_b32 s{sT1}, s{sTM}, 1"); a(f"v_mov_b32 v{vTAG}, s{sT1}"); a(f"s_lshr_b32 s{sT2}, s{sRB1}, 2"); a(f"s_lshl_b32 s{sT2}, s{sT2}, 6")
        a("s_mov_b64 exec, 1")
        g.vmem(f"buffer_store_dword v{vTAG}, v{vT0}, {srd(SDBG)}, s{sT2} offen sc0 sc1", "tagst")
        a("s_mov_b64 exec, -1")
    def job_bar(s):
        def f():
            if s <= 7: g.wait_vm(("w", s), ("x", s))
            if s == 88: a("s_waitcnt vmcnt(0)")
            a("s_barrier"); bars.add(s); g.stamp(f"B{s}")
        return f
    at(9, job_srds); at(9, job_tagstore); at(10, units); at(11, w2voff); at(11, lambda: a("s_setprio 0"))
    for s in range(8): at(7*s + 6 + opt.D, job_bar(s))
    at(opt.b8at, job_bar(8))
    if not opt.tq: at(opt.pauseat, job_bar(88))
    else:
        n0 = 56 + opt.trows
        def job_sync(i, nu):
            def f():
                g.wait_vm(("2", opt.w2order[nu-1])); a("s_barrier"); g.stamp(f"S{i}")
            return f
        for i in range(0, len(opt.syncs), 2): at(n0 + opt.syncs[i], job_sync(i//2, opt.syncs[i+1]))
    if opt.touchat or opt.tq:
        ng = max(1, len(opt.touchat))
        TR = opt.trows
        def job_tprep():
            a(f"s_lshr_b32 s{sT0}, s2, 3"); a(f"s_mul_i32 s{sT1}, s{sT0}, {4*TR}"); a(f"s_mul_i32 s{sT2}, s{sW}, {TR}"); a(f"s_add_u32 s{sT1}, s{sT1}, s{sT2}")
            a(f"s_lshl_b32 s{sT1}, s{sT1}, 10"); a(f"v_add_u32 v{vTCH}, s{sT1}, v{vL16}")
            a(f"s_lshr_b32 s{sT0}, s{sT0}, {opt.tshift}"); a(f"s_and_b32 s{sOUT}, s{sT0}, {ng-1}")
        at(12, job_tprep)
        def job_touch(gi):
            def f():
                a(f"s_cmp_lg_u32 s{sOUT}, {gi}"); a(f"s_cbranch_scc1 L_nt{gi}")
                for r in range(TR):
                    if r % 4 == 0: a(f"s_movk_i32 s{sT0}, {r*1024}")
                    a(f"buffer_load_dwordx4 v[{32+4*r}:{35+4*r}], v{vTCH}, {srd(SW2)}, s{sT0} offen offset:{(r%4)*1024}")
                g.lab(f"L_nt{gi}")
            return f
        for gi, n in enumerate(opt.touchat): at(n, job_touch(gi))
        REM = 1376 - 128*TR
        if REM > 0:
            assert opt.bal
            per = -(-REM // 8)
            def job_iprep():
                a(f"s_bfe_u32 s{sT0}, s2, 0x10006"); a(f"s_lshl_b32 s{sT0}, s{sT0}, 2"); a(f"s_add_u32 s{sT0}, s{sT0}, s{sW}")
                a(f"s_mul_i32 s{sT0}, s{sT0}, {per}"); a(f"s_add_u32 s{sT0}, s{sT0}, {128*TR}"); a(f"s_lshl_b32 s24, s{sT0}, 10")
            at(12, job_iprep)
            chunks = len(opt.idleat); cs = -(-per // chunks)
            def job_idle(ci):
                def f():
                    a(f"s_cmp_lg_u32 s{sNV}, 0"); a(f"s_cbranch_scc1 L_ni{ci}")
                    for r in range(ci*cs, min(per, (ci+1)*cs)):
                        if r % 4 == 0 or r == ci*cs: a(f"s_add_u32 s{sT0}, s24, {(r//4)*4096}")
                        a(f"buffer_load_dwordx4 v[{32+4*(r%16)}:{35+4*(r%16)}], v{vL16}, {srd(SW2)}, s{sT0} offen offset:{(r%4)*1024}")
                    g.lab(f"L_ni{ci}")
                return f
            for ci, n in enumerate(opt.idleat): at(n, job_idle(ci))
    for n, it in enumerate(Q):
        if opt.cap and opt.capfrom <= n <= opt.capto: a(f"s_waitcnt vmcnt({opt.cap-1})")
        if opt.tq and n == 56 + opt.trows and opt.twait >= 0: a(f"s_waitcnt vmcnt({opt.twait})"); g.stamp("tdone")
        emit(it)
        for f in jobs.get(n, []): f()
    g.stamp("issued")
    if opt.latew and not opt.tq:
        a(f"s_waitcnt vmcnt({4*opt.latew})"); a("s_barrier"); g.stamp("Bg")
    a("s_waitcnt vmcnt(0)")
    a("s_barrier")
    g.stamp("B9")
    if opt.stamps and opt.stampwave >= 4: dump_stamps(SWS)
    a("s_endpgm")

    g.lab("L_compute")
    g.role = "c"; g.vm = []; g.lg = []
    SWS, SOUT, SW2, SB1, SB2 = S0, S1, S2, S3, S4
    sFS = [24, 25, 29]; sFLc = 30; sTG = 12; sTGO = 11; sFV = 16; sC3 = 31
    if opt.cpf:
        a(f"s_getpc_b64 s[{S0}:{S0+1}]")
        g.lab("L_pc")
        a(f"s_lshr_b32 s{sT0}, s2, 3"); a(f"s_lshl_b32 s{sT0}, s{sT0}, 2"); a(f"s_add_u32 s{sT0}, s{sT0}, s{sW}"); a(f"s_lshl_b32 s{sT0}, s{sT0}, 7")
        a(f"s_min_u32 s{sT0}, s{sT0}, L_end-L_pc-64")
        a(f"s_load_dword s{S1}, s[{S0}:{S0+1}], s{sT0}"); a(f"s_load_dword s{S1+1}, s[{S0}:{S0+1}], s{sT0} offset:64")
    a(f"s_and_b32 s{sT0}, s{sRB1}, 1"); a(f"s_lshl_b32 s{sT0}, s{sT0}, 1")
    a(f"s_lshr_b32 s{sT1}, s{sW}, 1"); a(f"s_add_u32 s{sT0}, s{sT0}, s{sT1}"); a(f"s_cmp_eq_u32 s{sT0}, 3"); a(f"s_cselect_b32 s13, 0, s{sT0}")
    if opt.nocls: a("s_mov_b32 s13, 0")
    a(f"s_add_u32 s{sT0}, s13, 45"); a(f"s_sub_u32 s{sT0}, s{sT0}, s{sU0}")
    a(f"s_mul_i32 s{sT1}, s{sT0}, 43"); a(f"s_lshr_b32 s{sT1}, s{sT1}, 7"); a(f"s_mul_i32 s{sT1}, s{sT1}, 3"); a(f"s_sub_u32 s{sTP0}, s{sT0}, s{sT1}")
    for p in (1, 2):
        a(f"s_sub_u32 s{sTP0+p}, s{sTP0+p-1}, 1"); a(f"s_cselect_b32 s{sTP0+p}, 2, s{sTP0+p}")
    a(f"v_and_b32 v{vT0}, 31, v{vL}"); a(f"v_lshrrev_b32 v{vT1}, 5, v{vL}")
    a(f"v_lshrrev_b32 v{vXa}, 1, v{vT0}"); a(f"v_and_b32 v{vXa}, 7, v{vXa}"); a(f"v_xor_b32 v{vXa}, v{vXa}, v{vT1}"); a(f"v_lshlrev_b32 v{vXa}, 4, v{vXa}")
    a(f"v_lshl_add_u32 v{vXa}, v{vT0}, 7, v{vXa}")
    a(f"s_add_u32 s{sT1}, s{sW4K}, {XBASE}"); a(f"v_add_u32 v{vXa}, s{sT1}, v{vXa}")
    for ks in range(1, 4): a(f"v_xor_b32 v{vXa+ks}, {32*ks}, v{vXa}")
    a(f"v_lshlrev_b32 v{vOUTO}, 10, v{vT0}"); a(f"v_lshl_add_u32 v{vOUTO}, v{vT1}, 4, v{vOUTO}")
    R = vH0
    a(f"v_bfe_u32 v{vT0}, v{vL}, 4, 1"); a(f"v_lshlrev_b32 v{vT0}, 5, v{vT0}"); a(f"v_and_b32 v{R}, 3, v{vL}"); a(f"v_lshl_add_u32 v{vT0}, v{R}, 3, v{vT0}")
    a(f"v_bfe_u32 v{R}, v{vL}, 2, 2")
    a(f"v_lshl_add_u32 v{vWa}, v{vT1}, 3, v{R}"); a(f"v_mul_u32_u24 v{vWa}, 192, v{vWa}"); a(f"v_add_u32 v{vWa}, v{vWa}, v{vT0}")
    for p in (2, 1, 0):
        a(f"s_lshl_b32 s{sT1}, s{sTP0+p}, 6"); a(f"v_add_u32 v{vWa+p}, s{sT1}, v{vWa}")
    a(f"v_lshl_add_u32 v{vW2a}, v{vT1}, 2, v{R}"); a(f"v_lshl_add_u32 v{vW2a}, v{vW2a}, 7, v{vT0}")
    a(f"v_lshrrev_b32 v{R}, 1, v{R}"); a(f"s_and_b32 s{sT1}, s{sW}, 1"); a(f"v_xor_b32 v{R}, s{sT1}, v{R}")
    a(f"v_lshl_add_u32 v{vW2a}, v{R}, 6, v{vW2a}"); a(f"v_add_u32 v{vW2a}, s{sW4K}, v{vW2a}")
    a(f"v_xor_b32 v{vW2a+1}, 64, v{vW2a}")
    a(f"v_cmp_gt_u32 vcc, 32, v{vL}"); a(f"v_mov_b32 v{vT0}, 0x3f80"); a(f"v_lshlrev_b32 v{vT1}, 1, v{vL}"); a(f"v_cndmask_b32 v{BFR+16}, 0, v{vT0}, vcc")
    a(f"v_mov_b32 v{vT0}, 0x{OOB:x}"); a(f"v_cndmask_b32 v{vFZ}, v{vT0}, v{vT1}, vcc")
    for p in range(3):
        a(f"s_add_u32 s{sT1}, s{sU0}, s{sTP0+p}"); a(f"s_lshl_b32 s{sT1}, s{sT1}, 6"); a(f"v_add_u32 v{BFR+4*p}, s{sT1}, v{vFZ}")
    a(f"s_and_b32 s{sT1}, s{sJ2}, 7"); a(f"s_lshl_b32 s{sT1}, s{sT1}, 7"); a(f"s_and_b32 s{sT2}, s{sW}, 1"); a(f"s_lshl_b32 s{sT2}, s{sT2}, 6"); a(f"s_add_u32 s{sOUT}, s{sT1}, s{sT2}")
    a(f"v_add_u32 v{BFR+12}, s{sOUT}, v{vFZ}")
    a("s_waitcnt lgkmcnt(0)")
    mk(SB1, 20, 2752); mk(SB2, 24, 1024)
    if opt.wsoff:
        a(f"s_add_u32 s30, s30, 0x{opt.wsoff<<20:x}"); a("s_addc_u32 s31, s31, 0")
    mk(SWS, 30, WS_REC); mk(SOUT, 26, 2097152); mk(SW2, 22, 1409024)
    a("s_mov_b64 s[0:1], s[28:29]")
    a(f"s_mov_b32 s{sC3}, s13")
    g.stamp("karg")
    a(f"s_lshl_b32 s{sT0}, s{sRB1}, 2"); a(f"s_add_u32 s{sT0}, s{sT0}, s{sW}"); a(f"s_mul_i32 s{sT0}, s{sT0}, {HUNITS}"); a(f"s_add_u32 s{sT0}, s{sT0}, s{sU0}")
    for p in range(3):
        a(f"s_add_u32 s{sT1}, s{sT0}, s{sTP0+p}"); a(f"s_lshl_b32 s{sHS+p}, s{sT1}, 11")
    units(); w2voff()
    a(f"s_lshr_b32 s{sTGO}, s{sRB1}, 2"); a(f"s_lshl_b32 s{sTGO}, s{sTGO}, 6")
    a(f"s_lshl_b32 s{sT0}, s{sRB1}, 1"); a(f"s_lshr_b32 s{sT1}, s{sW}, 1"); a(f"s_add_u32 s{sT0}, s{sT0}, s{sT1}"); a(f"s_lshl_b32 s{sT0}, s{sT0}, 10")
    a(f"s_and_b32 s{sT1}, s{sW}, 1"); a(f"s_lshl_b32 s{sT1}, s{sT1}, 2"); a(f"s_add_u32 s{sT0}, s{sT0}, s{sT1}"); a(f"s_add_u32 s{sT0}, s{sT0}, {FLAG_OFF}")
    a(f"s_sub_u32 s{sFLc}, s{sU0}, s{sC3}"); a(f"s_add_u32 s{sFLc}, s{sFLc}, 43")
    for p in range(3):
        a(f"s_add_u32 s{sT1}, s{sFLc}, s{sTP0+p}"); a(f"s_mul_i32 s{sT1}, s{sT1}, 29")
        a(f"s_mul_hi_u32 s{sT2}, s{sT1}, 99882961"); a(f"s_mul_i32 s{sT2}, s{sT2}, 43"); a(f"s_sub_u32 s{sT1}, s{sT1}, s{sT2}")
        a(f"s_cmp_lt_u32 s{sTP0+p}, s{sNV}"); a(f"s_cselect_b32 s{sT1}, s{sT1}, 48")
        a(f"s_and_b32 s{sT2}, s{sT1}, 3"); a(f"s_lshl_b32 s{sT2}, s{sT2}, 8"); a(f"s_add_u32 s{sFS[p]}, s{sT2}, s{sT0}")
        a(f"s_and_b32 s{sT2}, s{sT1}, 12"); a(f"s_lshl_b32 s{sT2}, s{sT2}, 1"); a(f"s_add_u32 s{sFS[p]}, s{sFS[p]}, s{sT2}")
        a(f"s_and_b32 s{sT2}, s{sT1}, 48"); a(f"s_lshl_b32 s{sT2}, s{sT2}, 2"); a(f"s_add_u32 s{sFS[p]}, s{sFS[p]}, s{sT2}")
    a(f"s_lshl_b32 s{sT0}, s{sRB2}, 1"); a(f"s_lshr_b32 s{sT1}, s{sJ2}, 3"); a(f"s_add_u32 s{sT0}, s{sT0}, s{sT1}"); a(f"s_lshl_b32 s{sT0}, s{sT0}, 10")
    a(f"s_lshl_b32 s{sT1}, s{sW}, 8"); a(f"s_add_u32 s{sT0}, s{sT0}, s{sT1}"); a(f"s_add_u32 s{sFLc}, s{sT0}, {FLAG_OFF}")
    if opt.preflag:
        for i in range(3): a(f"s_buffer_load_dword s{sFV+i}, {srd(SWS)}, s{sFLc} offset:{64*i} glc")
    for p in range(3): g.vmem(f"buffer_load_ushort v{BFR+4*p}, v{BFR+4*p}, {srd(SB1)}, 0 offen", "b1")
    g.vmem(f"buffer_load_ushort v{BFR+12}, v{BFR+12}, {srd(SB2)}, 0 offen", "b2")
    c0 = -2.0*0.7978845608028654*1.4426950408889634; c1 = c0*0.044715
    for r, v in ((vC0, f32bits(c0)), (vC1, f32bits(c1)), (vONE, 0x3f800000)):
        a(f"v_mov_b32 v{r}, 0x{v:08x}"); a(f"v_mov_b32 v{r+1}, 0x{v:08x}")
    for p in range(5):
        for k in range(1, 4): a(f"v_mov_b32 v{BFR+4*p+k}, 0")
    a(f"s_lshl_b32 s{sT0}, s{sRB2}, 2"); a(f"s_lshr_b32 s{sT1}, s{sJ2}, 3"); a(f"s_lshl_b32 s{sT1}, s{sT1}, 1"); a(f"s_add_u32 s{sT0}, s{sT0}, s{sT1}")
    a(f"s_lshr_b32 s{sT1}, s{sW}, 1"); a(f"s_add_u32 s{sT2}, s{sT0}, s{sT1}"); a(f"s_mul_i32 s{sT1}, s{sT2}, {HUNITS*2048}"); a(f"v_add_u32 v{vH0}, s{sT1}, v{vL16}")
    a(f"s_lshl_b32 s{sT1}, s{sT2}, 15"); a(f"s_add_u32 s{sOUT}, s{sOUT}, s{sT1}")
    a(f"s_xor_b32 s{sT2}, s{sT2}, 1"); a(f"s_mul_i32 s{sT1}, s{sT2}, {HUNITS*2048}"); a(f"v_add_u32 v{vH1}, s{sT1}, v{vL16}")
    a(f"s_cmp_eq_u32 s{sW}, 3"); a(f"s_cselect_b32 s{sT1}, 0x{BIG:x}, 0")
    a(f"v_add_u32 v{vH0x}, s{sT1}, v{vH0}"); a(f"v_add_u32 v{vH1x}, s{sT1}, v{vH1}")
    for i in range(4): a(f"v_add_u32 v{vW2d+i}, s{sT1}, v{vW2d+i}")
    a(f"s_mov_b32 s{sCNT}, 0")
    a(f"v_mov_b32 v{vFZ}, 0")
    def acc1(p): return f"v[{ACC1+16*p}:{ACC1+16*p+15}]"
    def acc2(q): return f"v[{Q0}:{Q0+15}]" if q == 0 else f"a[{16*(q-1)}:{16*(q-1)+15}]"
    def biasmf():
        g.wait_vm("b1", "b2")
        for p in range(3):
            a(f"v_mfma_f32_32x32x16_bf16 {acc1(p)}, v[{BFR+4*p}:{BFR+4*p+3}], v[{BFR+16}:{BFR+19}], {acc1(p)}")
        a(f"v_mfma_f32_32x32x16_bf16 {acc2(0)}, v[{BFR+12}:{BFR+15}], v[{BFR+16}:{BFR+19}], 0")
    def tagload(): a(f"s_load_dword s{sTG}, s[0:1], s{sTGO}")
    def tagcheck():
        g.lab("L_tag")
        a("s_waitcnt lgkmcnt(0)")
        a(f"s_cmp_lg_u32 s{sTG}, 0"); a("s_cbranch_scc1 L_tagok")
        a("s_sleep 8")
        a(f"s_load_dword s{sTG}, s[0:1], s{sTGO} glc")
        a(f"s_add_u32 s{sCNT}, s{sCNT}, 1"); a(f"s_cmp_lt_u32 s{sCNT}, {opt.spin}"); a("s_cbranch_scc1 L_tag")
        a("s_waitcnt lgkmcnt(0)")
        g.lab("L_tagok")
        a(f"s_mov_b32 s{sTG+1}, s{sTG}"); a(f"v_mov_b32 v{vTG}, s{sTG}")
    def hflag(p):
        g.wait_vm(("hst", p))
        a("s_mov_b64 exec, 1")
        g.vmem(f"buffer_store_dword v{vTG}, v{vFZ}, {srd(SWS)}, s{sFS[p]} offen sc1", ("flag", p))
        a("s_mov_b64 exec, -1")
        if f"f{p}" not in g.stamps: g.stamp(f"f{p}")
    def fpoll(n): a(f"s_buffer_load_dwordx8 s[{sFV}:{sFV+7}], {srd(SWS)}, s{sFLc} offset:{64*n} glc")
    def fcmp(n):
        a("s_waitcnt lgkmcnt(0)")
        np_ = 4 if n < 2 else 3
        if n == 2:
            a(f"s_cmp_eq_u32 s{sW}, 3"); a(f"s_cselect_b64 s[{sFV+4}:{sFV+5}], s[{sTG}:{sTG+1}], s[{sFV+4}:{sFV+5}]")
        for i in range(np_): a(f"s_xor_b64 s[{sFV+2*i}:{sFV+2*i+1}], s[{sFV+2*i}:{sFV+2*i+1}], s[{sTG}:{sTG+1}]")
        for i in range(1, np_): a(f"s_or_b64 s[{sFV}:{sFV+1}], s[{sFV}:{sFV+1}], s[{sFV+2*i}:{sFV+2*i+1}]")
    def fgate(n):
        g.stamp(f"a{n}")
        g.lab(f"L_fg{n}")
        fcmp(n)
        a(f"s_cbranch_scc0 L_fgok{n}")
        fpoll(n)
        a(f"s_add_u32 s{sCNT}, s{sCNT}, {1 if not opt.stamps else 10**n}"); a(f"s_cmp_lt_u32 s{sCNT}, {opt.spin}"); a(f"s_cbranch_scc1 L_fg{n}")
        a("s_waitcnt lgkmcnt(0)")
        g.lab(f"L_fgok{n}")
        if n: g.stamp(f"g{n}")
    if opt.pad:
        a("s_branch L_pad0")
        g.lab("L_padret")
    g.stamp("ready")

    def fx(k): return FR + 16*(k % 3)
    def fw(k, p): return FR + 16*(k % 3) + 4 + 4*p
    def reads(k, regx=None, regw=None):
        s, ks = divmod(k, 4)
        out = []
        rx = fx(k) if regx is None else regx
        out.append(lambda: g.lds(f"ds_read_b128 v[{rx}:{rx+3}], v{vXa+ks} offset:{(s&3)*16384}", ("fx", k)))
        for p in range(3):
            for half in range(2):
                rw = (fw(k, p) if regw is None else regw(p)) + 2*half
                off = ((s & 3)*64 + 16*ks + 4*half)*192
                out.append(lambda rw=rw, off=off, p=p: g.lds(f"ds_read_b64_tr_b16 v[{rw}:{rw+1}], v{vWa+p} offset:{off}", ("fw", k, p)))
        return out
    def barrier(s):
        if s == 4:
            for p in range(3): a(f"v_add_u32 v{vWa+p}, {4*64*192}, v{vWa+p}")
        a("s_barrier")
        g.stamp(f"B{s}")
    def mf1(k, p, rw=None, rx=None):
        rw = fw(k, p) if rw is None else rw; rx = fx(k) if rx is None else rx
        a(f"v_mfma_f32_32x32x16_bf16 {acc1(p)}, v[{rw}:{rw+3}], v[{rx}:{rx+3}], {acc1(p) if k else 0}")
    barrier(0)
    for t in reads(0) + reads(1): t()
    NK = 28
    for k in range(NK):
        nxt = []
        if k + 2 < NK:
            if (k+2) % 4 == 0: barrier((k+2)//4)
            nxt = reads(k+2)
        g.wait_lg(("fx", k), ("fw", k, 0))
        mf1(k, 0)
        for t in nxt[:3]: t()
        g.wait_lg(("fw", k, 1))
        mf1(k, 1)
        for t in nxt[3:5]: t()
        g.wait_lg(("fw", k, 2))
        mf1(k, 2)
        for t in nxt[5:]: t()
        if k == opt.biask: biasmf()
    for p in range(3):
        a(f"s_cmp_lt_u32 s{sTP0+p}, s{sNV}"); a(f"s_cselect_b32 s{sT1}, 0, 0x{BIG:x}"); a(f"v_add_u32 v{vST+p}, s{sT1}, v{vL16}")
    barrier(7)
    allr = {}
    for k in range(28, 32):
        allr[k] = reads(k, regx=LX + 4*(k-28), regw=lambda p, k=k: LW + 16*p + 4*(k-28))
    for k in range(28, 32):
        allr[k][0](); allr[k][1](); allr[k][2]()
    later = []
    for p in (1, 2):
        for k in range(28, 32): later += [allr[k][1+2*p], allr[k][2+2*p]]
    for k in range(28, 32):
        g.wait_lg(("fx", k), ("fw", k, 0))
        mf1(k, 0, LW + 4*(k-28), LX + 4*(k-28))
        for t in later[:4]: t()
        later = later[4:]
    rest = [(p, k) for p in (1, 2) for k in range(28, 32)]
    def restmf(n):
        for _ in range(n):
            if not rest: return
            p, k = rest.pop(0)
            g.wait_lg(("fw", k, p))
            mf1(k, p, LW + 16*p + 4*(k-28), LX + 4*(k-28))
    restmf(1); a("s_nop 5")
    g.stamp("G1p0")
    hook = {}
    def gelu(p):
        A = ACC1 + 16*p; T = GT; D = GD + 8*p
        for h in range(0, 16, 4):
            x0, x1 = A+h, A+h+2; t0, t1 = T, T+2
            a(f"v_pk_mul_f32 v[{t0}:{t0+1}], v[{x0}:{x0+1}], v[{x0}:{x0+1}]")
            a(f"v_pk_mul_f32 v[{t1}:{t1+1}], v[{x1}:{x1+1}], v[{x1}:{x1+1}]")
            a(f"v_pk_fma_f32 v[{t0}:{t0+1}], v[{t0}:{t0+1}], v[{vC1}:{vC1+1}], v[{vC0}:{vC0+1}]")
            a(f"v_pk_fma_f32 v[{t1}:{t1+1}], v[{t1}:{t1+1}], v[{vC1}:{vC1+1}], v[{vC0}:{vC0+1}]")
            a(f"v_pk_mul_f32 v[{t0}:{t0+1}], v[{t0}:{t0+1}], v[{x0}:{x0+1}]")
            a(f"v_pk_mul_f32 v[{t1}:{t1+1}], v[{t1}:{t1+1}], v[{x1}:{x1+1}]")
            if opt.gm[0] and not (p == 0 and h == 12 and rest and rest[0][0] == 1): restmf(1)
            for i in range(4): a(f"v_exp_f32 v{T+i}, v{T+i}")
            a(f"v_pk_add_f32 v[{t0}:{t0+1}], v[{t0}:{t0+1}], v[{vONE}:{vONE+1}]")
            a(f"v_pk_add_f32 v[{t1}:{t1+1}], v[{t1}:{t1+1}], v[{vONE}:{vONE+1}]")
            if opt.gm[1]: restmf(1)
            for i in range(4): a(f"v_rcp_f32 v{T+i}, v{T+i}")
            a(f"v_pk_mul_f32 v[{t0}:{t0+1}], v[{t0}:{t0+1}], v[{x0}:{x0+1}]")
            a(f"v_pk_mul_f32 v[{t1}:{t1+1}], v[{t1}:{t1+1}], v[{x1}:{x1+1}]")
            a(f"v_cvt_pk_bf16_f32 v{D+h//2}, v{t0}, v{t0+1}")
            a(f"v_cvt_pk_bf16_f32 v{D+h//2+1}, v{t1}, v{t1+1}")
            if h in (4, 12):
                ks = h // 8
                g.vmem(f"buffer_store_dwordx4 v[{D+4*ks}:{D+4*ks+3}], v{vST+p}, {srd(SWS)}, s{sHS+p} offen offset:{ks*1024} sc1", ("hst", p))
                if ks == 1: g.stamp(f"st{p}")
            for f in hook.get((p, h//4), []): f()
            if h == 8: assert all(r[0] != p+1 for r in rest), "next tile MFMAs must be issued one chunk ahead"
    def bar8():
        a("s_waitcnt lgkmcnt(0)"); a("s_barrier"); g.stamp("B8"); tagload()
    hook[tuple(opt.b8c)] = [bar8]
    hook.setdefault(tuple(opt.flag0), []).extend([tagcheck, lambda: hflag(0)])
    if opt.pathx: hook.setdefault(tuple(opt.poll0), []).append(lambda: fpoll(0))
    if not opt.tq: hook.setdefault(tuple(opt.pausec), []).append(lambda: a("s_barrier"))
    gelu(0)
    if opt.pad:
        a("s_branch L_pad0over")
        g.L.append(".p2align 12")
        g.lab("L_pad0")
        a("s_branch L_padret")
        g.lab("L_pad0over")
    g.stamp("gelu0")
    gelu(1); gelu(2)
    assert not rest
    g.stamp("gelu")
    def hbase(pi): return HL + 16*(pi % NHR)
    def hreg(pi, mt, ks): return hbase(pi) + 8*mt + 4*ks
    def hload_parts(pi):
        parts = []
        for ks in range(2):
            for mt in range(2):
                r = hreg(pi, mt, ks); vo = (vH0x if pi == 10 else vH0) + mt
                l = f"buffer_load_dwordx4 v[{r}:{r+3}], v{vo}, {srd(SWS)}, s{sT0} offen offset:{ks*1024} sc1"
                parts.append([lambda l=l, ks=ks: g.vmem(l, ("h", pi, ks))])
        parts[0].insert(0, lambda: a(f"s_lshr_b32 s{sT0}, s{sUW+pi}, 4"))
        return parts
    def hloads(pi):
        for part in hload_parts(pi):
            for f in part: f()
    w2bump = [0]
    def wf(pi, ks, nt): return WF + 16*(pi % NWF) + 8*ks + 4*nt
    def w2read_parts(pi):
        base = w2slot(pi); want = base & ~0xffff
        pre = []
        if want != w2bump[0]:
            d = (want - w2bump[0]) & 0xffffffff
            pre += [lambda: a(f"v_add_u32 v{vW2a}, 0x{d:x}, v{vW2a}"), lambda: a(f"v_add_u32 v{vW2a+1}, 0x{d:x}, v{vW2a+1}")]
            w2bump[0] = want
        if pi == 10: pre.append(lambda: g.wait_vm(("2", 10)))
        ops = []
        for ks in range(2):
            for nt in range(2):
                for half in range(2):
                    r = wf(pi, ks, nt) + 2*half
                    ops.append(lambda r=r, nt=nt, ks=ks, half=half: g.lds(f"ds_read_b64_tr_b16 v[{r}:{r+1}], v{vW2a+nt} offset:{(base & 0xffff) + (16*ks + 8*half)*128}", ("w2f", pi)))
        return [pre + ops[0:2], ops[2:4], ops[4:6], ops[6:8]]
    HA = opt.hahead
    assert HA <= 4
    def first_frags():
        for pi in (0, 1):
            for part in w2read_parts(pi):
                for f in part: f()
    if not opt.tq: first_frags()
    if opt.pathx:
        fcmp(0); a("s_cbranch_scc0 L_fgok0")
        sv = list(g.vm)
        hflag(1); fpoll(0); hflag(2)
        a(f"v_mov_b32 v{vFZ}, 0x{OOB:x}")
        g.vm = sv
        if opt.stamps: a(f"s_add_u32 s{sCNT}, s{sCNT}, 1000")
    else:
        hflag(1); fpoll(0); hflag(2); g.stamp("flags")
    fgate(0); g.stamp("g0")
    for pi in range(HA):
        hloads(pi)
        if opt.pathx and pi == opt.xf[0]: hflag(1)
        if opt.pathx and pi == opt.xf[1]: hflag(2); g.stamp("flags")
        if pi == opt.p1pos: fpoll(1)
    g.stamp("val0")
    barpi = []
    if not opt.tq:
        late = set(opt.w2order[len(opt.w2order)-opt.latew:])
        ne = (opt.pauseat - 55) // 4
        mid = set(opt.w2order[ne:])
        assert {0, 1}.isdisjoint(mid)
        barpi = [min(mid) - 2] + ([min(late) - 2] if late else [])
    else:
        a("s_barrier"); g.stamp("S0")
        first_frags()
        for i in range(0, len(opt.syncs), 2):
            barpi.append(min(opt.w2order[opt.syncs[i+1]:]) - 2)
        assert barpi[0] >= 0 and barpi == sorted(barpi)
    started = set([0])
    def mf2(pi, ks, mt, nt):
        q = 2*mt + nt
        w = wf(pi, ks, nt); h = hreg(pi, mt, ks)
        c = acc2(q) if q in started else "0"
        started.add(q)
        a(f"v_mfma_f32_32x32x16_bf16 {acc2(q)}, v[{w}:{w+3}], v[{h}:{h+3}], {c}")
    NT = opt.tail
    vRED = vH0
    for pi in range(11 - NT):
        fill = [[] for _ in range(8)]
        if pi + HA <= 10:
            for i, part in enumerate(hload_parts(pi + HA)): fill[opt.hpos[i]] += part
        if pi + 2 <= 10:
            for i, part in enumerate(w2read_parts(pi + 2)): fill[opt.wpos[i]] += part
        if NT == 3 and pi == 7:
            assert HA >= 3
            for i, part in enumerate(w2read_parts(10)): fill[7] += part
        if pi == opt.d10:
            def dma10():
                a(f"s_add_u32 m0, s{sW4K}, {w2slot(10)}"); a("s_nop 0")
                for q in range(4): g.vmem(f"buffer_load_dwordx4 v{vW2d+q}, {srd(SW2)}, s{sUW+10} offen offset:{q*1024} lds", ("2", 10))
            fill[0] = [dma10] + fill[0]
        if pi + HA == 4: fgate(1)
        if pi + HA == 8 - opt.poll2: fill[0].append(lambda: fpoll(2))
        if pi + HA == 8: fgate(2)
        for _ in range(barpi.count(pi)): a("s_barrier")
        g.wait_lg(("w2f", pi))
        g.stamp(f"p{pi}")
        n = 0
        for ks in range(2):
            g.wait_vm(("h", pi, ks))
            for mt in range(2):
                for nt in range(2):
                    mf2(pi, ks, mt, nt)
                    for f in fill[n]: f()
                    n += 1
    def redw(q, i): g.lds(f"ds_write_b128 v{vRED}, a[{16*(q-1)+4*i}:{16*(q-1)+4*i+3}] offset:{q*16384 + i*1024}", "red")
    a(f"v_add_u32 v{vRED}, s{sW4K}, v{vL16}")
    for q in (1, 2, 3): a(f"v_xor_b32 v{8+q}, {q*4096}, v{vRED}")
    if NT:
        g.stamp("ptail")
        prev = None
        for q in (1, 2, 3, 0):
            n = 0; pend = [(prev, i) for i in range(4)] if prev else []
            for pi in range(11 - NT, 11):
                for ks in range(2):
                    if q == 1:
                        if ks == 0: g.wait_lg(("w2f", pi))
                        g.wait_vm(("h", pi, ks))
                    mf2(pi, ks, q >> 1, q & 1)
                    n += 1
                    if pend:
                        if n == 1: a("s_nop 7")
                        elif n == 2: a("s_nop 1"); redw(*pend.pop(0))
                        else: redw(*pend.pop(0))
            while pend: redw(*pend.pop(0))
            prev = q
        g.stamp("G2done")
    else:
        g.stamp("G2done")
        a("s_nop 7")
        for q in (1, 2, 3):
            for i in range(4): redw(q, i)
    a("s_waitcnt lgkmcnt(0)")
    a("s_barrier")
    g.stamp("redbar")
    for i in range(4):
        for q in (1, 2, 3):
            r = 48 + 16*(q-1) + 4*i
            g.lds(f"ds_read_b128 v[{r}:{r+3}], v{8+q} offset:{q*16384 + i*1024}", ("rr", i))
    for i in range(4):
        g.wait_lg(("rr", i))
        for h in (0, 2):
            d = 4*i + h
            a(f"v_pk_add_f32 v[{48+d}:{49+d}], v[{Q0+d}:{Q0+d+1}], v[{48+d}:{49+d}]")
            a(f"v_pk_add_f32 v[{64+d}:{65+d}], v[{64+d}:{65+d}], v[{80+d}:{81+d}]")
        for h in (0, 2):
            d = 4*i + h
            a(f"v_pk_add_f32 v[{48+d}:{49+d}], v[{48+d}:{49+d}], v[{64+d}:{65+d}]")
        for h in (0, 2):
            d = 4*i + h
            a(f"v_cvt_pk_bf16_f32 v{100 + 2*i + h//2}, v{48+d}, v{49+d}")
        if i & 1:
            b = 100 + 2*(i-1)
            a("s_nop 1")
            a(f"v_permlane32_swap_b32 v{b}, v{b+2}"); a(f"v_permlane32_swap_b32 v{b+1}, v{b+3}")
            a(f"buffer_store_dwordx4 v[{b}:{b+3}], v{vOUTO}, {srd(SOUT)}, s{sOUT} offen offset:{(i-1)*16} {opt.outflag}")
    g.stamp("end")
    if opt.echo:
        a("s_memrealtime s[100:101]"); a("s_waitcnt lgkmcnt(0)")
        a("s_sub_u32 s96, s98, s96"); a(f"s_mul_i32 s96, s96, {opt.echok}"); a("s_add_u32 s96, s96, s100")
        g.lab("L_echo")
        a("s_sleep 1"); a("s_memrealtime s[98:99]"); a("s_waitcnt lgkmcnt(0)")
        a("s_sub_u32 s97, s98, s96"); a("s_cmp_lt_i32 s97, 0"); a("s_cbranch_scc1 L_echo")
    if opt.stamps and opt.stampwave < 4:
        a("s_waitcnt vmcnt(0)")
        g.stamp("end2")
        dump_stamps(SWS)
    g.lab("L_end")
    hdr = open("standalone__dense_activation_gelu__prompt.s.ref").read().split("\n")
    hdr = [l for l in hdr if l.startswith(";") and "@launch" not in l]
    if opt.stamps: hdr.append("; STAMPS " + " ".join(f"{n:>6s}" for n in g.stamps))
    s = "\n".join(hdr) + f"""
; @launch grid=(256,1,1) block=(512,1,1) lds=163840
.amdgcn_target "amdgcn-amd-amdhsa--gfx950"
.text
.globl {KN}
.p2align {opt.align}
.p2align 8
.type {KN},@function
{KN}:
""" + "\n".join(g.L) + f"""
    s_endpgm
.section .rodata,"a"
.p2align 6
.amdhsa_kernel {KN}
  .amdhsa_next_free_vgpr 256
  .amdhsa_next_free_sgpr 102
  .amdhsa_accum_offset 208
  .amdhsa_group_segment_fixed_size 0
  .amdhsa_kernarg_size 64
  .amdhsa_user_sgpr_count 2
  .amdhsa_user_sgpr_kernarg_segment_ptr 1
  .amdhsa_system_sgpr_workgroup_id_x 1
  .amdhsa_float_denorm_mode_32 3
.end_amdhsa_kernel
"""
    return s

def ilist(s): return [int(x) for x in s.split(",")] if s else []
def slist(s): return s.split(",")
def parser():
    ap = argparse.ArgumentParser()
    A = ap.add_argument
    A("-o", default="k.s")
    A("--stamps", type=int, default=0)
    A("--only", type=slist, default=slist("start,B0,B7,gelu0,gelu,flags,g0,val0,S0,p1,p3,p5,ptail,redbar,end2"))
    A("--onlyh", type=slist, default=slist("start,karg,B0,B1,B3,B5,B7,B8,B88,tdone,S0,S1,issued,Bg,B9"))
    A("--stampwave", type=int, default=0)
    A("--D", type=int, default=8)
    A("--bal", type=int, default=1)
    A("--touchat", type=ilist, default=ilist("13,24,35,46"))
    A("--tshift", type=int, default=0)
    A("--trows", type=int, default=11)
    A("--idleat", type=ilist, default=ilist("14,21,28,35,42,49"))
    A("--b8at", type=int, default=71)
    A("--b8c", type=ilist, default=[0, 1])
    A("--pauseat", type=int, default=75)
    A("--pausec", type=ilist, default=[2, 3])
    A("--latew", type=int, default=3)
    A("--w2order", type=ilist, default=ilist("0,1,2,4,3,5,6,7,8,9"))
    A("--tq", type=int, default=0)
    A("--syncs", type=ilist, default=ilist("27,5"))
    A("--twait", type=int, default=-1)
    A("--cap", type=int, default=0)
    A("--capfrom", type=int, default=64)
    A("--capto", type=int, default=75)
    A("--wsoff", type=int, default=0)
    A("--cpf", type=int, default=1)
    A("--align", type=int, default=12)
    A("--pad", type=int, default=0)
    A("--biask", type=int, default=5)
    A("--gm", type=ilist, default=[1, 1])
    A("--flag0", type=ilist, default=[2, 1])
    A("--pathx", type=int, default=0)
    A("--poll0", type=ilist, default=[2, 1])
    A("--xf", type=ilist, default=[1, 2])
    A("--p1pos", type=int, default=2)
    A("--poll2", type=int, default=2)
    A("--preflag", type=int, default=1)
    A("--hrot", type=int, default=1)
    A("--nocls", type=int, default=0)
    A("--spin", type=int, default=20000)
    A("--outflag", default="")
    A("--xflag", default="")
    A("--hahead", type=int, default=3)
    A("--hpos", type=ilist, default=ilist("0,2,4,6"))
    A("--wpos", type=ilist, default=ilist("1,3,5,7"))
    A("--d10", type=int, default=0)
    A("--tail", type=int, default=2)
    A("--echo", type=slist, default=None)
    A("--echok", type=int, default=1)
    return ap
if __name__ == "__main__":
    opt = parser().parse_args()
    open(opt.o, "w").write(gen(opt))
```

```python
import sys, argparse, struct

KN = "standalone__dense_activation_gelu__prompt_kernel"
def f32bits(x): return struct.unpack("<I", struct.pack("<f", x))[0]

class Gen:
    def __init__(self, opt):
        self.o = opt; self.L = []; self.vm = []; self.lg = []; self.stamps = {}; self.role = "c"
    def a(self, s): self.L.append("    " + s)
    def lab(self, s): self.L.append(s + ":")
    def vmem(self, s, tag): self.a(s); self.vm.append(tag)
    def lds(self, s, tag): self.a(s); self.lg.append(tag)
    def _cnt(self, lst, tags):
        idx = max(i for i, t in enumerate(lst) if t in tags)
        return len(lst) - 1 - idx
    def wait_vm(self, *tags): self.a(f"s_waitcnt vmcnt({min(self._cnt(self.vm, tags), 63)})")
    def wait_lg(self, *tags): self.a(f"s_waitcnt lgkmcnt({min(self._cnt(self.lg, tags), 15)})")
    def stamp(self, name):
        o = self.o
        if o.echo and name in o.echo and self.role in ("c", "both"):
            r = 96 + 2*o.echo.index(name)
            self.a(f"s_memrealtime s[{r}:{r+1}]")
        if not o.stamps: return
        want = "h" if o.stampwave >= 4 else "c"
        if self.role not in (want, "both"): return
        if name not in (o.onlyh if want == "h" else o.only): return
        r = STAMP0 + 2*len(self.stamps)
        assert r + 1 <= 101, "too many stamps"
        self.a(f"{'s_memtime' if o.stamps != 2 else 's_memrealtime'} s[{r}:{r+1}]")
        self.stamps[name] = r
        if o.stamps == 3:
            self.a(f"s_memrealtime s[{r+2}:{r+3}]"); self.stamps[name + "_r"] = r + 2

W1ROW = 2752
HUNITS = 48
FLAG_OFF = 0x600000
WS_REC = 0x700000
XBASE = 98304
OOB = 0x7ffffff0
BIG = 0x40000000

sRB1, sJL, sW, sROT = 3, 4, 5, 6
sT0, sT1, sT2 = 7, 8, 9
sW4K, sW3K, sXS, sW1S, sCNT, sOUT = 10, 11, 12, 13, 14, 15
S0, S1, S2, S3, S4 = 32, 36, 40, 44, 48
sNV, sU0, sRB2, sJ2 = 52, 53, 54, 55
sTP0 = 56; sUW = 59; sTM = 70; STAMP0 = 72
sHS = 26
def srd(b): return f"s[{b}:{b+3}]"

vL = 1
vT0, vT1, vL16, vZ = 2, 3, 4, 5
vXd, vW1d, vW2d = 8, 12, 16
vTAG, vTCH = 20, 21
vXa, vWa, vW2a = 8, 12, 6
vH0, vH1, vOUTO, vFZ = 20, 21, 22, 23
vC0, vC1, vONE = 24, 26, 28
vH0x, vH1x = 30, 31
vTG = 15
ACC1 = 32; FR = 80; LX = 128; LW = 144; BFR = 144
GT = 80; GD = 96; vST = 120
HL = 32; NHR = 6
WF = 128; NWF = 4
Q0 = 192

def gen(opt):
    g = Gen(opt); a = g.a
    g.role = "both"
    g.stamp("start")
    a("s_load_dwordx16 s[16:31], s[0:1], 0")
    a(f"s_memrealtime s[{sTM}:{sTM+1}]")
    a("s_cmp_ge_u32 s2, 256")
    a("s_cbranch_scc1 L_end")
    a(f"v_lshrrev_b32 v{vT0}, 6, v0")
    a(f"v_and_b32 v{vL}, 63, v0")
    a(f"s_and_b32 s{sT2}, s2, 1")
    a(f"v_readfirstlane_b32 s{sW}, v{vT0}")
    a(f"s_bfe_u32 s{sJL}, s2, 0x30003")
    a(f"s_lshr_b32 s{sT0}, s2, 6")
    a(f"s_bfe_u32 s{sT1}, s2, 0x20001")
    a(f"s_lshl_b32 s{sRB1}, s{sT1}, 2"); a(f"s_add_u32 s{sRB1}, s{sRB1}, s{sT0}")
    if opt.khalf: a(f"s_add_u32 s{sROT}, s{sT0}, s{sJL}")
    else: a(f"s_lshl_b32 s{sROT}, s{sT0}, 1"); a(f"s_add_u32 s{sROT}, s{sROT}, s{sJL}")
    a(f"s_mul_i32 s{sU0}, s{sT2}, 22"); a(f"s_mul_i32 s{sT1}, s{sJL}, 3"); a(f"s_add_u32 s{sU0}, s{sU0}, s{sT1}")
    if opt.bal: a(f"s_lshr_b32 s{sT0}, s{sT0}, 1"); a(f"s_xor_b32 s{sT2}, s{sT2}, s{sT0}")
    a(f"s_xor_b32 s{sT2}, s{sT2}, 1")
    a(f"s_cmp_eq_u32 s{sJL}, 7"); a(f"s_cselect_b32 s{sNV}, s{sT2}, 3"); a(f"s_cselect_b32 s{sU0}, 21, s{sU0}")
    if not opt.p2split:
        a(f"s_and_b32 s{sRB2}, s2, 7"); a(f"s_lshl_b32 s{sRB2}, s{sRB2}, 1"); a(f"s_lshr_b32 s{sT1}, s2, 7"); a(f"s_add_u32 s{sRB2}, s{sRB2}, s{sT1}")
        a(f"s_bfe_u32 s{sJ2}, s2, 0x40003")
    else:
        a(f"s_mov_b32 s{sRB2}, s{sRB1}")
        a(f"s_bfe_u32 s{sJ2}, s2, 0x20003"); a(f"s_and_b32 s{sT1}, s2, 1"); a(f"s_lshl_b32 s{sT1}, s{sT1}, 2"); a(f"s_or_b32 s{sJ2}, s{sJ2}, s{sT1}")
        a(f"s_bfe_u32 s{sT1}, s2, 0x10005"); a(f"s_lshl_b32 s{sT1}, s{sT1}, 3"); a(f"s_or_b32 s{sJ2}, s{sJ2}, s{sT1}")
    a(f"v_lshlrev_b32 v{vL16}, 4, v{vL}")
    a(f"v_mov_b32 v{vZ}, 0")
    a(f"s_mov_b32 s{sT2}, s{sW}")
    a(f"s_and_b32 s{sW}, s{sW}, 3")
    a(f"s_lshl_b32 s{sW4K}, s{sW}, 12")
    a(f"s_cmp_lt_u32 s{sT2}, 4")
    a("s_cbranch_scc1 L_compute")

    def mk(b, p, n):
        a(f"s_mov_b32 s{b}, s{p}"); a(f"s_and_b32 s{b+1}, s{p+1}, 0xffff"); a(f"s_mov_b32 s{b+2}, {n}"); a(f"s_mov_b32 s{b+3}, 0x20000")
    def units():
        a(f"s_and_b32 s{sT0}, s{sRB2}, 1"); a(f"s_lshl_b32 s{sT0}, s{sT0}, 1")
        a(f"s_lshr_b32 s{sT1}, s{sJ2}, 3"); a(f"s_add_u32 s{sT2}, s{sT0}, s{sT1}"); a(f"s_cmp_eq_u32 s{sT2}, 3"); a(f"s_cselect_b32 s{sT2}, 0, s{sT2}")
        if opt.nocls: a(f"s_mov_b32 s{sT2}, 0")
        a(f"s_mul_i32 s{sT1}, s{sW}, 3"); a(f"s_add_u32 s{sT1}, s{sT1}, s{sT2}")
        if not opt.hrot:
            a(f"s_lshl_b32 s{sUW}, s{sT1}, 15")
            for pi in range(1, 11):
                a(f"s_add_u32 s{sUW+pi}, s{sUW+pi-1}, {12<<15}"); a(f"s_sub_u32 s{sT1}, s{sUW+pi}, {43<<15}"); a(f"s_cselect_b32 s{sUW+pi}, s{sUW+pi}, s{sT1}")
        else:
            a(f"s_lshl_b32 s{sT2}, s{sT1}, 15")
            for pi in range(11):
                if pi in (4, 8): a(f"s_add_u32 s{sT2}, s{sT2}, {5<<15}")
                if pi == 10: a(f"s_add_u32 s{sUW+pi}, s{sT2}, {24<<15}")
                else:
                    a(f"s_add_u32 s{sT1}, s{sJ2}, {pi}"); a(f"s_and_b32 s{sT1}, s{sT1}, {3 if pi < 8 else 1}")
                    a(f"s_mul_i32 s{sT1}, s{sT1}, {12<<15}"); a(f"s_add_u32 s{sUW+pi}, s{sT2}, s{sT1}")
                a(f"s_sub_u32 s{sT1}, s{sUW+pi}, {43<<15}"); a(f"s_cselect_b32 s{sUW+pi}, s{sUW+pi}, s{sT1}")
    def w2voff():
        a(f"v_lshrrev_b32 v{vT0}, 3, v{vL}"); a(f"v_and_b32 v{vT1}, 7, v{vL}")
        a(f"v_lshlrev_b32 v{vW2d}, 1, v{vT0}"); a(f"v_and_b32 v{vW2d}, 4, v{vW2d}"); a(f"v_xor_b32 v{vW2d}, v{vW2d}, v{vT1}")
        a(f"v_lshlrev_b32 v{vW2d}, 4, v{vW2d}"); a(f"v_lshl_add_u32 v{vW2d}, v{vT0}, 10, v{vW2d}")
        a(f"s_and_b32 s{sT1}, s{sJ2}, 7"); a(f"s_lshl_b32 s{sT1}, s{sT1}, 7"); a(f"v_add_u32 v{vW2d}, s{sT1}, v{vW2d}")
        if "w2" in opt.abl: a(f"v_add_u32 v{vW2d}, 0x20000000, v{vW2d}")
        for q in range(1, 4): a(f"v_add_u32 v{vW2d+q}, {q*7168}, v{vW2d}")
    def w2slot(pi):
        if pi < 4: return pi*16384
        if pi < 8: return XBASE + (pi-4)*16384
        if pi < 10: return 65536 + (pi-8)*16384
        return 0
    def dump_stamps(SWS_):
        a("s_waitcnt lgkmcnt(0)")
        a(f"s_mov_b32 s{SWS_+2}, 0x10000000")
        if opt.stampwave >= 0:
            a(f"v_cmp_eq_u32 vcc, {opt.stampwave*64}, v0"); a(f"s_and_saveexec_b64 s[16:17], vcc"); a("s_cbranch_execz L_end")
            a(f"s_mul_i32 s{sT0}, s2, 128"); a(f"s_add_u32 s{sT0}, s{sT0}, 0x8000000")
        else:
            a("s_mov_b64 exec, 1")
            a(f"s_lshl_b32 s{sT0}, s2, 2"); a(f"s_add_u32 s{sT0}, s{sT0}, s{sW}"); a(f"s_mul_i32 s{sT0}, s{sT0}, 128"); a(f"s_add_u32 s{sT0}, s{sT0}, 0x8000000")
        st = list(g.stamps.values())
        a(f"s_add_u32 s18, s{st[0]}, s{sCNT}"); a(f"s_addc_u32 s19, s{st[0]+1}, 0")
        while len(st) < 15: st.append(st[0])
        st.append(18)
        for i, r in enumerate(st):
            a(f"v_mov_b32 v2, s{r}"); a(f"v_mov_b32 v3, s{r+1}")
            a(f"buffer_store_dwordx2 v[2:3], v{vZ}, {srd(SWS_)}, s{sT0} offen offset:{i*8}")
            a("s_nop 1")

    g.role = "h"; g.vm = []; g.lg = []
    SX, SW1, SW2, SWS, SDBG = S0, S1, S2, S3, S4
    a("s_setprio 1")
    a(f"s_mul_i32 s{sW3K}, s{sW}, 3072")
    a(f"s_cmp_eq_u32 s{sNV}, 0"); a(f"s_cselect_b32 s{sT2}, 0x{BIG:x}, 0")
    def w1voff():
        a(f"s_lshl_b32 s{sT1}, s{sU0}, 6"); a(f"s_mul_i32 s{sT0}, s{sW}, {16*W1ROW}"); a(f"s_add_u32 s{sT1}, s{sT1}, s{sT0}")
        a(f"s_lshl_b32 s{sT0}, s{sNV}, 2")
        a(f"v_mov_b32 v{vTCH}, 0x{BIG:x}")
        for q in range(3):
            a(f"v_add_u32 v{vT0}, {64*q}, v{vL}")
            a(f"v_mul_u32_u24 v{vT1}, 0x5556, v{vT0}"); a(f"v_lshrrev_b32 v{vT1}, 18, v{vT1}")
            a(f"v_mul_u32_u24 v{vW1d+q}, {W1ROW - 192}, v{vT1}")
            a(f"v_mul_u32_u24 v{vT1}, 12, v{vT1}"); a(f"v_sub_u32 v{vT0}, v{vT0}, v{vT1}")
            a(f"v_cmp_gt_u32 vcc, s{sT0}, v{vT0}")
            a(f"v_add3_u32 v{vW1d+q}, v{vW1d+q}, v{vL16}, s{sT1}")
            a(f"s_nop 0")
            a(f"v_cndmask_b32 v{vW1d+q}, v{vTCH}, v{vW1d+q}, vcc")
    if not opt.xfirst: w1voff()
    a(f"s_lshl_b32 s{sT1}, s{sRB1}, 17"); a(f"s_lshl_b32 s{sT0}, s{sW}, 15"); a(f"s_add_u32 s{sT1}, s{sT1}, s{sT0}"); a(f"s_add_u32 s{sT1}, s{sT1}, s{sT2}")
    a(f"v_lshrrev_b32 v{vT0}, 3, v{vL}"); a(f"v_and_b32 v{vT1}, 7, v{vL}")
    a(f"v_lshrrev_b32 v{vXd}, 1, v{vT0}"); a(f"v_xor_b32 v{vXd}, v{vXd}, v{vT1}"); a(f"v_lshlrev_b32 v{vXd}, 4, v{vXd}")
    a(f"v_lshl_add_u32 v{vXd}, v{vT0}, 10, v{vXd}"); a(f"v_add_u32 v{vXd}, s{sT1}, v{vXd}")
    a(f"v_xor_b32 v{vXd+1}, 64, v{vXd}"); a(f"v_add_u32 v{vXd+1}, {7168}, v{vXd+1}")
    a(f"v_add_u32 v{vXd+2}, {2*7168}, v{vXd}"); a(f"v_add_u32 v{vXd+3}, {2*7168}, v{vXd+1}")
    a("s_waitcnt lgkmcnt(0)")
    if "x" in opt.abl:
        for i in range(4): a(f"v_add_u32 v{vXd+i}, 0x20000000, v{vXd+i}")
    if "w1" in opt.abl:
        for i in range(3): a(f"v_add_u32 v{vW1d+i}, 0x20000000, v{vW1d+i}")
    if opt.xfirst: mk(SX, 16, 2097152)
    else: mk(SW1, 18, 1409024); mk(SX, 16, 2097152)
    g.stamp("karg")
    Q = []
    for s in range(8):
        Q += [("w", s, q) for q in range(3)] + [("x", s, p) for p in range(4)]
    if opt.xfirst: Q = Q[3:7] + Q[0:3] + Q[7:]
    for pi in opt.w2order: Q += [("2", pi, q) for q in range(4)]
    if opt.tq: Q = Q[:56] + [("t", 0, r) for r in range(opt.trows)] + Q[56:]
    pre2 = {0: 3, 1: 4, 2: 5, 3: 7, 4: 6, 5: 7, 6: 7, 7: 8, 8: 7, 9: 8}
    bars = set()
    def kst(s):
        a(f"s_add_u32 s{sT1}, s{sROT}, {s}")
        if opt.khalf:
            a(f"s_and_b32 s{sT1}, s{sT1}, 3"); a(f"s_and_b32 s{sT2}, s{sJL}, 4")
            if s >= 4: a(f"s_xor_b32 s{sT2}, s{sT2}, 4")
            a(f"s_or_b32 s{sT1}, s{sT1}, s{sT2}")
        else: a(f"s_and_b32 s{sT1}, s{sT1}, 7")
    def emit(it, counted=True):
        k, s, p = it
        n0 = len(g.vm)
        emit2(it)
        if not counted: del g.vm[n0:]
    def emit2(it):
        k, s, p = it
        if k == "w":
            if p == 0:
                a(f"s_add_u32 m0, s{sW3K}, {s*12288}")
                kst(s); a(f"s_mul_i32 s{sW1S}, s{sT1}, {64*W1ROW}")
            g.vmem(f"buffer_load_dwordx4 v{vW1d+p}, {srd(SW1)}, s{sW1S} offen offset:{p*1024} {opt.w1flag if s >= opt.w1from else ''} lds", ("w", s))
        elif k == "x":
            assert s < 4 or (s-2) in bars, it
            if p == 0:
                a(f"s_add_u32 m0, s{sW4K}, {XBASE + (s & 3)*16384}")
                kst(s); a(f"s_lshl_b32 s{sXS}, s{sT1}, 7")
            g.vmem(f"buffer_load_dwordx4 v{vXd+p}, {srd(SX)}, s{sXS} offen offset:{p*1024} {opt.xflag if s >= opt.xfrom else ''} lds", ("x", s))
        elif k == "t":
            if p % 4 == 0: a(f"s_movk_i32 s25, {p*1024}")
            g.vmem(f"buffer_load_dwordx4 v[{32+4*p}:{35+4*p}], v{vTCH}, {srd(SW2)}, s25 offen offset:{(p%4)*1024}", "t")
        else:
            assert pre2[s] in bars, it
            if p == 0: a(f"s_add_u32 m0, s{sW4K}, {w2slot(s)}"); a("s_nop 0")
            g.vmem(f"buffer_load_dwordx4 v{vW2d+p}, {srd(SW2)}, s{sUW+s} offen offset:{p*1024} {opt.w2flag} lds", ("2", s))
    jobs = {}
    def at(n, f): jobs.setdefault(n, []).append(f)
    def job_srds():
        mk(SW2, 22, 1409024); mk(SDBG, 28, 256)
        if opt.stamps: mk(SWS, 30, WS_REC); a(f"s_mov_b32 s{sCNT}, 0")
    def job_tagstore():
        a(f"s_lshr_b32 s{sT1}, s2, 3"); a(f"s_and_b32 s{sT2}, s2, 1"); a(f"s_or_b32 s{sT1}, s{sT1}, s{sT2}"); a(f"s_or_b32 s{sT1}, s{sT1}, s{sW}")
        a(f"s_cselect_b32 s{sT1}, 0x{OOB:x}, 0"); a(f"v_mov_b32 v{vT0}, s{sT1}")
        a(f"s_or_b32 s{sT1}, s{sTM}, 1"); a(f"v_mov_b32 v{vTAG}, s{sT1}"); a(f"s_lshr_b32 s{sT2}, s{sRB1}, 2"); a(f"s_lshl_b32 s{sT2}, s{sT2}, 6")
        a("s_mov_b64 exec, 1")
        g.vmem(f"buffer_store_dword v{vTAG}, v{vT0}, {srd(SDBG)}, s{sT2} offen sc0 sc1", "tagst")
        a("s_mov_b64 exec, -1")
    def job_bar(s):
        def f():
            if s <= 7: g.wait_vm(("w", s), ("x", s))
            if s == 88: a("s_waitcnt vmcnt(0)")
            a("s_barrier"); bars.add(s); g.stamp(f"B{s}")
        return f
    if opt.xfirst: at(3, lambda: (mk(SW1, 18, 1409024), w1voff()))
    if opt.diag1:
        def dj():
            g.stamp("iss")
            for n in range(opt.diag1, -1, -1): a(f"s_waitcnt vmcnt({n})"); g.stamp(f"v{n}")
        at(opt.diag1, dj)
    at(9, job_srds); at(9, job_tagstore); at(10, units); at(11, w2voff); at(11, lambda: a("s_setprio 0"))
    for s in range(8): at(7*s + 6 + (opt.D0[s] if s < len(opt.D0) else opt.D), job_bar(s))
    at(opt.b8at, job_bar(8))
    if not opt.tq: at(opt.pauseat, job_bar(88))
    else:
        n0 = 56 + opt.trows
        def job_sync(i, nu):
            def f():
                g.wait_vm(("2", opt.w2order[nu-1])); a("s_barrier"); g.stamp(f"S{i}")
            return f
        for i in range(0, len(opt.syncs), 2): at(n0 + opt.syncs[i], job_sync(i//2, opt.syncs[i+1]))
    if opt.touchat or opt.tq:
        ng = max(1, len(opt.touchat))
        TR = opt.trows
        def job_tprep():
            a(f"s_lshr_b32 s{sT0}, s2, 3"); a(f"s_mul_i32 s{sT1}, s{sT0}, {4*TR}"); a(f"s_mul_i32 s{sT2}, s{sW}, {TR}"); a(f"s_add_u32 s{sT1}, s{sT1}, s{sT2}")
            a(f"s_lshl_b32 s{sT1}, s{sT1}, 10")
            if not opt.p2split: a(f"v_add_u32 v{vTCH}, s{sT1}, v{vL16}")
            else:
                a(f"s_and_b32 s{sT2}, s2, 1"); a(f"s_lshl_b32 s{sT2}, s{sT2}, 9"); a(f"s_add_u32 s{sT1}, s{sT1}, s{sT2}")
                a(f"v_and_b32 v{vT0}, 512, v{vL16}"); a(f"v_add3_u32 v{vTCH}, s{sT1}, v{vL16}, v{vT0}")
            a(f"s_lshr_b32 s{sT0}, s{sT0}, {opt.tshift}"); a(f"s_and_b32 s{sOUT}, s{sT0}, {ng-1}")
        at(opt.tprep, job_tprep)
        def job_touch(gi):
            def f():
                a(f"s_cmp_lg_u32 s{sOUT}, {gi}"); a(f"s_cbranch_scc1 L_nt{gi}")
                if opt.khalf == 2:
                    for q in range(3): emit(("w", 4, q), False)
                for r in range(0, TR, 2 if opt.p2split else 1):
                    if r % 4 == 0: a(f"s_movk_i32 s{sT0}, {r*1024}")
                    a(f"buffer_load_dwordx4 v[{32+4*r}:{35+4*r}], v{vTCH}, {srd(SW2)}, s{sT0} offen offset:{(r%4)*1024}")
                g.lab(f"L_nt{gi}")
            return f
        for gi, n in enumerate(opt.touchat): at(n, job_touch(gi))
        REM = 1376 - 128*TR
        if REM > 0:
            assert opt.bal
            per = -(-REM // 8)
            def job_iprep():
                a(f"s_bfe_u32 s{sT0}, s2, 0x10006"); a(f"s_lshl_b32 s{sT0}, s{sT0}, 2"); a(f"s_add_u32 s{sT0}, s{sT0}, s{sW}")
                a(f"s_mul_i32 s{sT0}, s{sT0}, {per}"); a(f"s_add_u32 s{sT0}, s{sT0}, {128*TR}"); a(f"s_lshl_b32 s24, s{sT0}, 10")
            at(12, job_iprep)
            chunks = len(opt.idleat); cs = -(-per // chunks)
            def job_idle(ci):
                def f():
                    a(f"s_cmp_lg_u32 s{sNV}, 0"); a(f"s_cbranch_scc1 L_ni{ci}")
                    for r in range(ci*cs, min(per, (ci+1)*cs)):
                        if r % 4 == 0 or r == ci*cs: a(f"s_add_u32 s{sT0}, s24, {(r//4)*4096}")
                        a(f"buffer_load_dwordx4 v[{32+4*(r%16)}:{35+4*(r%16)}], v{vL16}, {srd(SW2)}, s{sT0} offen offset:{(r%4)*1024}")
                    g.lab(f"L_ni{ci}")
                return f
            for ci, n in enumerate(opt.idleat): at(n, job_idle(ci))
    for n, it in enumerate(Q):
        if opt.cap and opt.capfrom <= n <= opt.capto: a(f"s_waitcnt vmcnt({opt.cap-1})")
        if opt.tq and n == 56 + opt.trows and opt.twait >= 0: a(f"s_waitcnt vmcnt({opt.twait})"); g.stamp("tdone")
        if not (opt.khalf == 2 and it[:2] == ("w", 4)): emit(it)
        for f in jobs.get(n, []): f()
    g.stamp("issued")
    if opt.latew and not opt.tq:
        a(f"s_waitcnt vmcnt({4*opt.latew})"); a("s_barrier"); g.stamp("Bg")
    a("s_waitcnt vmcnt(0)")
    a("s_barrier")
    g.stamp("B9")
    if opt.stamps and opt.stampwave >= 4: dump_stamps(SWS)
    a("s_endpgm")

    g.lab("L_compute")
    g.role = "c"; g.vm = []; g.lg = []
    SWS, SOUT, SW2, SB1, SB2 = S0, S1, S2, S3, S4
    sFS = [24, 25, 29]; sFLc = 30; sTG = 12; sTGO = 11; sFV = 16; sC3 = 31
    if opt.cpf == 1:
        a(f"s_getpc_b64 s[{S0}:{S0+1}]")
        g.lab("L_pc")
        a(f"s_lshr_b32 s{sT0}, s2, 3"); a(f"s_lshl_b32 s{sT0}, s{sT0}, 2"); a(f"s_add_u32 s{sT0}, s{sT0}, s{sW}"); a(f"s_lshl_b32 s{sT0}, s{sT0}, 7")
        a(f"s_min_u32 s{sT0}, s{sT0}, L_end-L_pc-64")
        a(f"s_load_dword s{S1}, s[{S0}:{S0+1}], s{sT0}"); a(f"s_load_dword s{S1+1}, s[{S0}:{S0+1}], s{sT0} offset:64")
    if opt.cpf == 3:
        a(f"s_getpc_b64 s[{S0}:{S0+1}]")
        g.lab("L_pc")
        a(f"s_sub_u32 s{S0}, s{S0}, L_pc-{KN}"); a(f"s_subb_u32 s{S0+1}, s{S0+1}, 0")
        a(f"s_lshr_b32 s{sT0}, s2, 3"); a(f"s_lshl_b32 s{sT0}, s{sT0}, 2"); a(f"s_add_u32 s{sT0}, s{sT0}, s{sW}"); a(f"s_lshl_b32 s{sT0}, s{sT0}, 7")
        a(f"s_min_u32 s{sT0}, s{sT0}, L_end-{KN}-64")
        a(f"s_load_dword s{S1}, s[{S0}:{S0+1}], s{sT0}"); a(f"s_load_dword s{S1+1}, s[{S0}:{S0+1}], s{sT0} offset:64")
    def cpf():
        a(f"s_getpc_b64 s[{sTM}:{sTM+1}]")
        g.lab("L_pc")
        a(f"s_lshr_b32 s{sT0}, s2, 3"); a(f"s_lshl_b32 s{sT0}, s{sT0}, 2"); a(f"s_add_u32 s{sT0}, s{sT0}, s{sW}"); a(f"s_lshl_b32 s{sT0}, s{sT0}, 7")
        a(f"s_min_u32 s{sT0}, s{sT0}, L_end-L_pc-64")
        a(f"s_load_dword s{sFV+4}, s[{sTM}:{sTM+1}], s{sT0}"); a(f"s_load_dword s{sFV+5}, s[{sTM}:{sTM+1}], s{sT0} offset:64")
    a(f"s_and_b32 s{sT0}, s{sRB1}, 1"); a(f"s_lshl_b32 s{sT0}, s{sT0}, 1")
    a(f"s_lshr_b32 s{sT1}, s{sW}, 1"); a(f"s_add_u32 s{sT0}, s{sT0}, s{sT1}"); a(f"s_cmp_eq_u32 s{sT0}, 3"); a(f"s_cselect_b32 s13, 0, s{sT0}")
    if opt.nocls: a("s_mov_b32 s13, 0")
    a(f"s_add_u32 s{sT0}, s13, 45"); a(f"s_sub_u32 s{sT0}, s{sT0}, s{sU0}")
    a(f"s_mul_i32 s{sT1}, s{sT0}, 43"); a(f"s_lshr_b32 s{sT1}, s{sT1}, 7"); a(f"s_mul_i32 s{sT1}, s{sT1}, 3"); a(f"s_sub_u32 s{sTP0}, s{sT0}, s{sT1}")
    for p in (1, 2):
        a(f"s_sub_u32 s{sTP0+p}, s{sTP0+p-1}, 1"); a(f"s_cselect_b32 s{sTP0+p}, 2, s{sTP0+p}")
    a(f"v_and_b32 v{vT0}, 31, v{vL}"); a(f"v_lshrrev_b32 v{vT1}, 5, v{vL}")
    a(f"v_lshrrev_b32 v{vXa}, 1, v{vT0}"); a(f"v_and_b32 v{vXa}, 7, v{vXa}"); a(f"v_xor_b32 v{vXa}, v{vXa}, v{vT1}"); a(f"v_lshlrev_b32 v{vXa}, 4, v{vXa}")
    a(f"v_lshl_add_u32 v{vXa}, v{vT0}, 7, v{vXa}")
    a(f"s_add_u32 s{sT1}, s{sW4K}, {XBASE}"); a(f"v_add_u32 v{vXa}, s{sT1}, v{vXa}")
    for ks in range(1, 4): a(f"v_xor_b32 v{vXa+ks}, {32*ks}, v{vXa}")
    if opt.ost == 0:
        a(f"v_lshlrev_b32 v{vOUTO}, 10, v{vT0}"); a(f"v_lshl_add_u32 v{vOUTO}, v{vT1}, 4, v{vOUTO}")
    elif opt.ost == 1:
        a(f"v_and_b32 v{vOUTO}, 15, v{vL}"); a(f"v_lshlrev_b32 v{vOUTO}, 10, v{vOUTO}"); a(f"v_lshl_add_u32 v{vOUTO}, v{vT1}, 4, v{vOUTO}")
        a(f"v_bfe_u32 v{vH0}, v{vL}, 4, 1"); a(f"v_lshl_add_u32 v{vOUTO}, v{vH0}, 5, v{vOUTO}")
    elif opt.ost == 3:
        a(f"v_lshrrev_b32 v{vOUTO}, 3, v{vL}"); a(f"v_lshlrev_b32 v{vOUTO}, 10, v{vOUTO}"); a(f"v_and_b32 v{vH0}, 7, v{vL}"); a(f"v_lshl_add_u32 v{vOUTO}, v{vH0}, 4, v{vOUTO}")
        a(f"s_and_b32 s{sT1}, s{sW}, 1"); a(f"s_mul_i32 s{sT1}, s{sT1}, {16384-64}"); a(f"v_add_u32 v{vOUTO}, s{sT1}, v{vOUTO}")
    else:
        a(f"v_lshrrev_b32 v{vOUTO}, 2, v{vL}"); a(f"v_lshlrev_b32 v{vOUTO}, 10, v{vOUTO}"); a(f"v_and_b32 v{vH0}, 3, v{vL}"); a(f"v_lshl_add_u32 v{vOUTO}, v{vH0}, 4, v{vOUTO}")
    R = vH0
    a(f"v_bfe_u32 v{vT0}, v{vL}, 4, 1"); a(f"v_lshlrev_b32 v{vT0}, 5, v{vT0}"); a(f"v_and_b32 v{R}, 3, v{vL}"); a(f"v_lshl_add_u32 v{vT0}, v{R}, 3, v{vT0}")
    a(f"v_bfe_u32 v{R}, v{vL}, 2, 2")
    a(f"v_lshl_add_u32 v{vWa}, v{vT1}, 3, v{R}"); a(f"v_mul_u32_u24 v{vWa}, 192, v{vWa}"); a(f"v_add_u32 v{vWa}, v{vWa}, v{vT0}")
    for p in (2, 1, 0):
        a(f"s_lshl_b32 s{sT1}, s{sTP0+p}, 6"); a(f"v_add_u32 v{vWa+p}, s{sT1}, v{vWa}")
    a(f"v_lshl_add_u32 v{vW2a}, v{vT1}, 2, v{R}"); a(f"v_lshl_add_u32 v{vW2a}, v{vW2a}, 7, v{vT0}")
    a(f"v_lshrrev_b32 v{R}, 1, v{R}"); a(f"s_and_b32 s{sT1}, s{sW}, 1"); a(f"v_xor_b32 v{R}, s{sT1}, v{R}")
    a(f"v_lshl_add_u32 v{vW2a}, v{R}, 6, v{vW2a}"); a(f"v_add_u32 v{vW2a}, s{sW4K}, v{vW2a}")
    a(f"v_xor_b32 v{vW2a+1}, 64, v{vW2a}")
    a(f"v_cmp_gt_u32 vcc, 32, v{vL}"); a(f"v_mov_b32 v{vT0}, 0x3f80"); a(f"v_lshlrev_b32 v{vT1}, 1, v{vL}"); a(f"v_cndmask_b32 v{BFR+16}, 0, v{vT0}, vcc")
    a(f"v_mov_b32 v{vT0}, 0x{OOB:x}"); a(f"v_cndmask_b32 v{vFZ}, v{vT0}, v{vT1}, vcc")
    for p in range(3):
        a(f"s_add_u32 s{sT1}, s{sU0}, s{sTP0+p}"); a(f"s_lshl_b32 s{sT1}, s{sT1}, 6"); a(f"v_add_u32 v{BFR+4*p}, s{sT1}, v{vFZ}")
    a(f"s_and_b32 s{sT1}, s{sJ2}, 7"); a(f"s_lshl_b32 s{sT1}, s{sT1}, 7"); a(f"s_and_b32 s{sT2}, s{sW}, 1"); a(f"s_lshl_b32 s{sT2}, s{sT2}, 6"); a(f"s_add_u32 s{sOUT}, s{sT1}, s{sT2}")
    a(f"v_add_u32 v{BFR+12}, s{sOUT}, v{vFZ}")
    a("s_waitcnt lgkmcnt(0)")
    mk(SB1, 20, 2752); mk(SB2, 24, 1024)
    if opt.wsoff:
        a(f"s_add_u32 s30, s30, 0x{opt.wsoff<<20:x}"); a("s_addc_u32 s31, s31, 0")
    mk(SWS, 30, WS_REC); mk(SOUT, 26, 2097152); mk(SW2, 22, 1409024)
    a("s_mov_b64 s[0:1], s[28:29]")
    a(f"s_mov_b32 s{sC3}, s13")
    if opt.cpf == 2: cpf()
    g.stamp("karg")
    a(f"s_lshl_b32 s{sT0}, s{sRB1}, 2"); a(f"s_add_u32 s{sT0}, s{sT0}, s{sW}"); a(f"s_mul_i32 s{sT0}, s{sT0}, {HUNITS}"); a(f"s_add_u32 s{sT0}, s{sT0}, s{sU0}")
    for p in range(3):
        a(f"s_add_u32 s{sT1}, s{sT0}, s{sTP0+p}"); a(f"s_lshl_b32 s{sHS+p}, s{sT1}, 11")
    units(); w2voff()
    a(f"s_lshr_b32 s{sTGO}, s{sRB1}, 2"); a(f"s_lshl_b32 s{sTGO}, s{sTGO}, 6")
    a(f"s_lshl_b32 s{sT0}, s{sRB1}, 1"); a(f"s_lshr_b32 s{sT1}, s{sW}, 1"); a(f"s_add_u32 s{sT0}, s{sT0}, s{sT1}"); a(f"s_lshl_b32 s{sT0}, s{sT0}, 10")
    a(f"s_and_b32 s{sT1}, s{sW}, 1"); a(f"s_lshl_b32 s{sT1}, s{sT1}, 2"); a(f"s_add_u32 s{sT0}, s{sT0}, s{sT1}"); a(f"s_add_u32 s{sT0}, s{sT0}, {FLAG_OFF}")
    a(f"s_sub_u32 s{sFLc}, s{sU0}, s{sC3}"); a(f"s_add_u32 s{sFLc}, s{sFLc}, 43")
    for p in range(3):
        a(f"s_add_u32 s{sT1}, s{sFLc}, s{sTP0+p}"); a(f"s_mul_i32 s{sT1}, s{sT1}, 29")
        a(f"s_mul_hi_u32 s{sT2}, s{sT1}, 99882961"); a(f"s_mul_i32 s{sT2}, s{sT2}, 43"); a(f"s_sub_u32 s{sT1}, s{sT1}, s{sT2}")
        a(f"s_cmp_lt_u32 s{sTP0+p}, s{sNV}"); a(f"s_cselect_b32 s{sT1}, s{sT1}, 48")
        a(f"s_and_b32 s{sT2}, s{sT1}, 3"); a(f"s_lshl_b32 s{sT2}, s{sT2}, 8"); a(f"s_add_u32 s{sFS[p]}, s{sT2}, s{sT0}")
        a(f"s_and_b32 s{sT2}, s{sT1}, 12"); a(f"s_lshl_b32 s{sT2}, s{sT2}, 1"); a(f"s_add_u32 s{sFS[p]}, s{sFS[p]}, s{sT2}")
        a(f"s_and_b32 s{sT2}, s{sT1}, 48"); a(f"s_lshl_b32 s{sT2}, s{sT2}, 2"); a(f"s_add_u32 s{sFS[p]}, s{sFS[p]}, s{sT2}")
    a(f"s_lshl_b32 s{sT0}, s{sRB2}, 1"); a(f"s_lshr_b32 s{sT1}, s{sJ2}, 3"); a(f"s_add_u32 s{sT0}, s{sT0}, s{sT1}"); a(f"s_lshl_b32 s{sT0}, s{sT0}, 10")
    a(f"s_lshl_b32 s{sT1}, s{sW}, 8"); a(f"s_add_u32 s{sT0}, s{sT0}, s{sT1}"); a(f"s_add_u32 s{sFLc}, s{sT0}, {FLAG_OFF}")
    if opt.preflag:
        for i in range(3): a(f"s_buffer_load_dword s{sFV+i}, {srd(SWS)}, s{sFLc} offset:{64*i} glc")
    def biasld():
        for p in range(3): g.vmem(f"buffer_load_ushort v{BFR+4*p}, v{BFR+4*p}, {srd(SB1)}, 0 offen", "b1")
        g.vmem(f"buffer_load_ushort v{BFR+12}, v{BFR+12}, {srd(SB2)}, 0 offen", "b2")
    if opt.bldk == -2: biasld()
    c0 = -2.0*0.7978845608028654*1.4426950408889634; c1 = c0*0.044715
    for r, v in ((vC0, f32bits(c0)), (vC1, f32bits(c1)), (vONE, 0x3f800000)):
        a(f"v_mov_b32 v{r}, 0x{v:08x}"); a(f"v_mov_b32 v{r+1}, 0x{v:08x}")
    for p in range(5):
        for k in range(1, 4): a(f"v_mov_b32 v{BFR+4*p+k}, 0")
    a(f"s_lshl_b32 s{sT0}, s{sRB2}, 2"); a(f"s_lshr_b32 s{sT1}, s{sJ2}, 3"); a(f"s_lshl_b32 s{sT1}, s{sT1}, 1"); a(f"s_add_u32 s{sT0}, s{sT0}, s{sT1}")
    a(f"s_lshr_b32 s{sT1}, s{sW}, 1"); a(f"s_add_u32 s{sT2}, s{sT0}, s{sT1}"); a(f"s_mul_i32 s{sT1}, s{sT2}, {HUNITS*2048}"); a(f"v_add_u32 v{vH0}, s{sT1}, v{vL16}")
    a(f"s_lshl_b32 s{sT1}, s{sT2}, 15"); a(f"s_add_u32 s{sOUT}, s{sOUT}, s{sT1}")
    a(f"s_xor_b32 s{sT2}, s{sT2}, 1"); a(f"s_mul_i32 s{sT1}, s{sT2}, {HUNITS*2048}"); a(f"v_add_u32 v{vH1}, s{sT1}, v{vL16}")
    if "hld" in opt.abl: a(f"v_add_u32 v{vH0}, 0x20000000, v{vH0}"); a(f"v_add_u32 v{vH1}, 0x20000000, v{vH1}")
    a(f"s_cmp_eq_u32 s{sW}, 3"); a(f"s_cselect_b32 s{sT1}, 0x{BIG:x}, 0")
    a(f"v_add_u32 v{vH0x}, s{sT1}, v{vH0}"); a(f"v_add_u32 v{vH1x}, s{sT1}, v{vH1}")
    for i in range(4): a(f"v_add_u32 v{vW2d+i}, s{sT1}, v{vW2d+i}")
    if opt.tlb:
        a("s_mov_b64 exec, 1")
        a(f"s_movk_i32 s{sT0}, 0x5c00"); a(f"s_lshl_b32 s{sT0}, s{sT0}, 2")
        if opt.tlb & 1: g.vmem(f"buffer_load_dword v{vT0}, v{vH0}, {srd(SWS)}, s{sT0} offen", "tlb")
        if opt.tlb & 2: g.vmem(f"buffer_load_dword v{vT0}, v{vZ}, {srd(SOUT)}, s{sOUT} offen", "tlb")
        if opt.tlb & 4: g.vmem(f"buffer_load_dword v{vT0}, v{vZ}, {srd(SWS)}, s{sFLc} offen offset:192", "tlb")
        a("s_mov_b64 exec, -1")
    a(f"s_mov_b32 s{sCNT}, 0")
    a(f"v_mov_b32 v{vFZ}, 0")
    def acc1(p): return f"v[{ACC1+16*p}:{ACC1+16*p+15}]"
    def acc2(q): return f"v[{Q0}:{Q0+15}]" if q == 0 else f"a[{16*(q-1)}:{16*(q-1)+15}]"
    def biasmf():
        g.wait_vm("b1", "b2")
        for p in range(3):
            a(f"v_mfma_f32_32x32x16_bf16 {acc1(p)}, v[{BFR+4*p}:{BFR+4*p+3}], v[{BFR+16}:{BFR+19}], {acc1(p)}")
        a(f"v_mfma_f32_32x32x16_bf16 {acc2(0)}, v[{BFR+12}:{BFR+15}], v[{BFR+16}:{BFR+19}], 0")
    def tagload(): a(f"s_load_dword s{sTG}, s[0:1], s{sTGO}")
    def tagcheck():
        g.lab("L_tag")
        a("s_waitcnt lgkmcnt(0)")
        a(f"s_cmp_lg_u32 s{sTG}, 0"); a("s_cbranch_scc1 L_tagok")
        a("s_sleep 8")
        a(f"s_load_dword s{sTG}, s[0:1], s{sTGO} glc")
        a(f"s_add_u32 s{sCNT}, s{sCNT}, 1"); a(f"s_cmp_lt_u32 s{sCNT}, {opt.spin}"); a("s_cbranch_scc1 L_tag")
        a("s_waitcnt lgkmcnt(0)")
        g.lab("L_tagok")
        a(f"s_mov_b32 s{sTG+1}, s{sTG}"); a(f"v_mov_b32 v{vTG}, s{sTG}")
    def hflag(p):
        if "ack" not in opt.abl: g.wait_vm(("hst", p))
        a("s_mov_b64 exec, 1")
        g.vmem(f"buffer_store_dword v{vTG}, v{vFZ}, {srd(SWS)}, s{sFS[p]} offen sc1", ("flag", p))
        a("s_mov_b64 exec, -1")
        if f"f{p}" not in g.stamps: g.stamp(f"f{p}")
    def fpoll(n):
      if "poll" not in opt.abl: a(f"s_buffer_load_dwordx8 s[{sFV}:{sFV+7}], {srd(SWS)}, s{sFLc} offset:{64*n} glc")
    def fcmp(n):
        a("s_waitcnt lgkmcnt(0)")
        np_ = 4 if n < 2 else 3
        if n == 2:
            a(f"s_cmp_eq_u32 s{sW}, 3"); a(f"s_cselect_b64 s[{sFV+4}:{sFV+5}], s[{sTG}:{sTG+1}], s[{sFV+4}:{sFV+5}]")
        for i in range(np_): a(f"s_xor_b64 s[{sFV+2*i}:{sFV+2*i+1}], s[{sFV+2*i}:{sFV+2*i+1}], s[{sTG}:{sTG+1}]")
        for i in range(1, np_): a(f"s_or_b64 s[{sFV}:{sFV+1}], s[{sFV}:{sFV+1}], s[{sFV+2*i}:{sFV+2*i+1}]")
    def fgate(n):
        g.stamp(f"a{n}")
        g.lab(f"L_fg{n}")
        fcmp(n)
        a(f"s_cbranch_scc0 L_fgok{n}" if "gate" not in opt.abl else f"s_branch L_fgok{n}")
        fpoll(n)
        a(f"s_add_u32 s{sCNT}, s{sCNT}, {1 if not opt.stamps else 10**n}"); a(f"s_cmp_lt_u32 s{sCNT}, {opt.spin}"); a(f"s_cbranch_scc1 L_fg{n}")
        a("s_waitcnt lgkmcnt(0)")
        g.lab(f"L_fgok{n}")
        if n: g.stamp(f"g{n}")
    if opt.pad:
        a("s_branch L_pad0")
        g.lab("L_padret")
    if opt.bldk == -1: biasld()
    g.stamp("ready")

    def fx(k): return FR + 16*(k % 3)
    def fw(k, p): return FR + 16*(k % 3) + 4 + 4*p
    def reads(k, regx=None, regw=None):
        s, ks = divmod(k, 4)
        out = []
        rx = fx(k) if regx is None else regx
        out.append(lambda: g.lds(f"ds_read_b128 v[{rx}:{rx+3}], v{vXa+ks} offset:{(s&3)*16384}", ("fx", k)))
        for p in range(3):
            for half in range(2):
                rw = (fw(k, p) if regw is None else regw(p)) + 2*half
                off = ((s & 3)*64 + 16*ks + 4*half)*192
                out.append(lambda rw=rw, off=off, p=p: g.lds(f"ds_read_b64_tr_b16 v[{rw}:{rw+1}], v{vWa+p} offset:{off}", ("fw", k, p)))
        return out
    def barrier(s):
        if s == 4:
            for p in range(3): a(f"v_add_u32 v{vWa+p}, {4*64*192}, v{vWa+p}")
        a("s_barrier")
        g.stamp(f"B{s}")
    def mf1(k, p, rw=None, rx=None):
        rw = fw(k, p) if rw is None else rw; rx = fx(k) if rx is None else rx
        a(f"v_mfma_f32_32x32x16_bf16 {acc1(p)}, v[{rw}:{rw+3}], v[{rx}:{rx+3}], {acc1(p) if k else 0}")
    barrier(0)
    for t in reads(0) + reads(1): t()
    NK = 28
    for k in range(NK):
        nxt = []
        if k + 2 < NK:
            if (k+2) % 4 == 0: barrier((k+2)//4)
            nxt = reads(k+2)
        g.wait_lg(("fx", k), ("fw", k, 0))
        mf1(k, 0)
        for t in nxt[:3]: t()
        g.wait_lg(("fw", k, 1))
        mf1(k, 1)
        for t in nxt[3:5]: t()
        g.wait_lg(("fw", k, 2))
        mf1(k, 2)
        for t in nxt[5:]: t()
        if k == opt.bldk: biasld()
        if k == opt.biask: biasmf()
    for p in range(3):
        a(f"s_cmp_lt_u32 s{sTP0+p}, s{sNV}"); a(f"s_cselect_b32 s{sT1}, {0 if 'hst' not in opt.abl else '2.0'}, 0x{BIG:x}"); a(f"v_add_u32 v{vST+p}, s{sT1}, v{vL16}")
    barrier(7)
    allr = {}
    for k in range(28, 32):
        allr[k] = reads(k, regx=LX + 4*(k-28), regw=lambda p, k=k: LW + 16*p + 4*(k-28))
    for k in range(28, 32):
        allr[k][0](); allr[k][1](); allr[k][2]()
    later = []
    for p in (1, 2):
        for k in range(28, 32): later += [allr[k][1+2*p], allr[k][2+2*p]]
    for k in range(28, 32):
        g.wait_lg(("fx", k), ("fw", k, 0))
        mf1(k, 0, LW + 4*(k-28), LX + 4*(k-28))
        for t in later[:4]: t()
        later = later[4:]
    rest = [(p, k) for p in (1, 2) for k in range(28, 32)]
    def restmf(n):
        for _ in range(n):
            if not rest: return
            p, k = rest.pop(0)
            g.wait_lg(("fw", k, p))
            mf1(k, p, LW + 16*p + 4*(k-28), LX + 4*(k-28))
    restmf(1); a("s_nop 5")
    g.stamp("G1p0")
    hook = {}
    def gelu(p):
        A = ACC1 + 16*p; T = GT; D = GD + 8*p
        for h in range(0, 16, 4):
            x0, x1 = A+h, A+h+2; t0, t1 = T, T+2
            a(f"v_pk_mul_f32 v[{t0}:{t0+1}], v[{x0}:{x0+1}], v[{x0}:{x0+1}]")
            a(f"v_pk_mul_f32 v[{t1}:{t1+1}], v[{x1}:{x1+1}], v[{x1}:{x1+1}]")
            a(f"v_pk_fma_f32 v[{t0}:{t0+1}], v[{t0}:{t0+1}], v[{vC1}:{vC1+1}], v[{vC0}:{vC0+1}]")
            a(f"v_pk_fma_f32 v[{t1}:{t1+1}], v[{t1}:{t1+1}], v[{vC1}:{vC1+1}], v[{vC0}:{vC0+1}]")
            a(f"v_pk_mul_f32 v[{t0}:{t0+1}], v[{t0}:{t0+1}], v[{x0}:{x0+1}]")
            a(f"v_pk_mul_f32 v[{t1}:{t1+1}], v[{t1}:{t1+1}], v[{x1}:{x1+1}]")
            if opt.gm[0] and not (p == 0 and h == 12 and rest and rest[0][0] == 1): restmf(1)
            for i in range(4): a(f"v_exp_f32 v{T+i}, v{T+i}")
            a(f"v_pk_add_f32 v[{t0}:{t0+1}], v[{t0}:{t0+1}], v[{vONE}:{vONE+1}]")
            a(f"v_pk_add_f32 v[{t1}:{t1+1}], v[{t1}:{t1+1}], v[{vONE}:{vONE+1}]")
            if opt.gm[1]: restmf(1)
            for i in range(4): a(f"v_rcp_f32 v{T+i}, v{T+i}")
            a(f"v_pk_mul_f32 v[{t0}:{t0+1}], v[{t0}:{t0+1}], v[{x0}:{x0+1}]")
            a(f"v_pk_mul_f32 v[{t1}:{t1+1}], v[{t1}:{t1+1}], v[{x1}:{x1+1}]")
            a(f"v_cvt_pk_bf16_f32 v{D+h//2}, v{t0}, v{t0+1}")
            a(f"v_cvt_pk_bf16_f32 v{D+h//2+1}, v{t1}, v{t1+1}")
            if h in (4, 12):
                ks = h // 8
                g.vmem(f"buffer_store_dwordx4 v[{D+4*ks}:{D+4*ks+3}], v{vST+p}, {srd(SWS)}, s{sHS+p} offen offset:{ks*1024} sc1", ("hst", p))
                if ks == 1: g.stamp(f"st{p}")
            for f in hook.get((p, h//4), []): f()
            if h == 8: assert all(r[0] != p+1 for r in rest), "next tile MFMAs must be issued one chunk ahead"
    def bar8():
        a("s_waitcnt lgkmcnt(0)"); a("s_barrier"); g.stamp("B8"); tagload()
    hook[tuple(opt.b8c)] = [bar8]
    hook.setdefault(tuple(opt.flag0), []).extend([tagcheck, lambda: hflag(0)])
    if opt.pathx: hook.setdefault(tuple(opt.poll0), []).append(lambda: fpoll(0))
    if not opt.tq: hook.setdefault(tuple(opt.pausec), []).append(lambda: a("s_barrier"))
    gelu(0)
    if opt.pad:
        a("s_branch L_pad0over")
        g.L.append(".p2align 12")
        g.lab("L_pad0")
        a("s_branch L_padret")
        g.lab("L_pad0over")
    g.stamp("gelu0")
    gelu(1); gelu(2)
    assert not rest
    g.stamp("gelu")
    def hbase(pi): return HL + 16*(pi % NHR)
    def hreg(pi, mt, ks): return hbase(pi) + 8*mt + 4*ks
    def hload_parts(pi):
        parts = []
        for ks in range(2):
            for mt in range(2):
                r = hreg(pi, mt, ks); vo = (vH0x if pi == 10 else vH0) + mt
                l = f"buffer_load_dwordx4 v[{r}:{r+3}], v{vo}, {srd(SWS)}, s{sT0} offen offset:{ks*1024} sc1"
                parts.append([lambda l=l, ks=ks: g.vmem(l, ("h", pi, ks))])
        parts[0].insert(0, lambda: a(f"s_lshr_b32 s{sT0}, s{sUW+pi}, 4"))
        return parts
    def hloads(pi):
        for part in hload_parts(pi):
            for f in part: f()
    w2bump = [0]
    def wf(pi, ks, nt): return WF + 16*(pi % NWF) + 8*ks + 4*nt
    def w2read_parts(pi):
        base = w2slot(pi); want = base & ~0xffff
        pre = []
        if want != w2bump[0]:
            d = (want - w2bump[0]) & 0xffffffff
            pre += [lambda: a(f"v_add_u32 v{vW2a}, 0x{d:x}, v{vW2a}"), lambda: a(f"v_add_u32 v{vW2a+1}, 0x{d:x}, v{vW2a+1}")]
            w2bump[0] = want
        if pi == 10: pre.append(lambda: g.wait_vm(("2", 10)))
        ops = []
        for ks in range(2):
            for nt in range(2):
                for half in range(2):
                    r = wf(pi, ks, nt) + 2*half
                    ops.append(lambda r=r, nt=nt, ks=ks, half=half: g.lds(f"ds_read_b64_tr_b16 v[{r}:{r+1}], v{vW2a+nt} offset:{(base & 0xffff) + (16*ks + 8*half)*128}", ("w2f", pi)))
        return [pre + ops[0:2], ops[2:4], ops[4:6], ops[6:8]]
    HA = opt.hahead
    assert HA <= 4
    def first_frags():
        for pi in (0, 1):
            for part in w2read_parts(pi):
                for f in part: f()
    if not opt.tq: first_frags()
    if opt.pathx:
        fcmp(0); a("s_cbranch_scc0 L_fgok0")
        sv = list(g.vm)
        hflag(1); fpoll(0); hflag(2)
        a(f"v_mov_b32 v{vFZ}, 0x{OOB:x}")
        g.vm = sv
        if opt.stamps: a(f"s_add_u32 s{sCNT}, s{sCNT}, 1000")
    else:
        hflag(1); fpoll(0); hflag(2); g.stamp("flags")
    fgate(0); g.stamp("g0")
    for pi in range(HA):
        hloads(pi)
        if opt.pathx and pi == opt.xf[0]: hflag(1)
        if opt.pathx and pi == opt.xf[1]: hflag(2); g.stamp("flags")
        if pi == opt.p1pos: fpoll(1)
    g.stamp("val0")
    barpi = []
    if not opt.tq:
        late = set(opt.w2order[len(opt.w2order)-opt.latew:])
        ne = (opt.pauseat - 55) // 4
        mid = set(opt.w2order[ne:])
        assert {0, 1}.isdisjoint(mid)
        barpi = [min(mid) - 2] + ([min(late) - 2] if late else [])
    else:
        a("s_barrier"); g.stamp("S0")
        first_frags()
        for i in range(0, len(opt.syncs), 2):
            barpi.append(min(opt.w2order[opt.syncs[i+1]:]) - 2)
        assert barpi[0] >= 0 and barpi == sorted(barpi)
    started = set([0])
    def mf2(pi, ks, mt, nt):
        q = 2*mt + nt
        w = wf(pi, ks, nt); h = hreg(pi, mt, ks)
        c = acc2(q) if q in started else "0"
        started.add(q)
        a(f"v_mfma_f32_32x32x16_bf16 {acc2(q)}, v[{w}:{w+3}], v[{h}:{h+3}], {c}")
    NT = opt.tail
    vRED = vH0
    for pi in range(11 - NT):
        fill = [[] for _ in range(8)]
        if pi + HA <= 10:
            for i, part in enumerate(hload_parts(pi + HA)): fill[opt.hpos[i]] += part
        if pi + 2 <= 10:
            for i, part in enumerate(w2read_parts(pi + 2)): fill[opt.wpos[i]] += part
        if NT == 3 and pi == 7:
            assert HA >= 3
            for i, part in enumerate(w2read_parts(10)): fill[7] += part
        if pi == opt.d10:
            def dma10():
                a(f"s_add_u32 m0, s{sW4K}, {w2slot(10)}"); a("s_nop 0")
                for q in range(4): g.vmem(f"buffer_load_dwordx4 v{vW2d+q}, {srd(SW2)}, s{sUW+10} offen offset:{q*1024} lds", ("2", 10))
            fill[0] = [dma10] + fill[0]
        if pi + HA == 4: fgate(1)
        if pi + HA == 8 - opt.poll2: fill[0].append(lambda: fpoll(2))
        if pi + HA == 8: fgate(2)
        for _ in range(barpi.count(pi)): a("s_barrier")
        g.wait_lg(("w2f", pi))
        g.stamp(f"p{pi}")
        n = 0
        for ks in range(2):
            g.wait_vm(("h", pi, ks))
            for mt in range(2):
                for nt in range(2):
                    mf2(pi, ks, mt, nt)
                    for f in fill[n]: f()
                    n += 1
    def redw(q, i): g.lds(f"ds_write_b128 v{vRED}, a[{16*(q-1)+4*i}:{16*(q-1)+4*i+3}] offset:{q*16384 + i*1024}", "red")
    a(f"v_add_u32 v{vRED}, s{sW4K}, v{vL16}")
    for q in (1, 2, 3): a(f"v_xor_b32 v{8+q}, {q*4096}, v{vRED}")
    if opt.ost == 2:
        a(f"s_add_u32 s{sT1}, s{sW4K}, {XBASE}")
        a(f"v_and_b32 v{vT0}, 31, v{vL}"); a(f"v_lshrrev_b32 v{vT1}, 5, v{vL}"); a(f"v_lshlrev_b32 v12, 6, v{vT0}"); a(f"v_lshl_add_u32 v12, v{vT1}, 3, v12")
        a(f"v_bfe_u32 v{vT0}, v{vL}, 1, 2"); a(f"v_lshl_add_u32 v12, v{vT0}, 4, v12"); a(f"v_add_u32 v12, s{sT1}, v12")
        for i in range(1, 4): a(f"v_xor_b32 v{12+i}, {16*i}, v12")
        a(f"v_bfe_u32 v{vT0}, v{vL}, 3, 2"); a(f"v_lshlrev_b32 v{vT0}, 4, v{vT0}"); a(f"v_xor_b32 v16, v{vT0}, v{vL16}"); a(f"v_add_u32 v16, s{sT1}, v16")
    if opt.ost == 3:
        a(f"s_and_b32 s{sT1}, s{sW}, 2"); a(f"s_lshl_b32 s{sT1}, s{sT1}, 12"); a(f"s_add_u32 s{sT1}, s{sT1}, {XBASE}")
        a(f"s_and_b32 s{sT2}, s{sW}, 1"); a(f"s_lshl_b32 s{sT0}, s{sT2}, 6")
        a(f"v_and_b32 v{vT0}, 31, v{vL}"); a(f"v_lshrrev_b32 v{vT1}, 5, v{vL}"); a(f"v_lshlrev_b32 v12, 7, v{vT0}"); a(f"v_lshl_add_u32 v12, v{vT1}, 3, v12")
        a(f"v_and_b32 v{vT0}, 7, v{vL}"); a(f"v_lshl_add_u32 v12, v{vT0}, 4, v12"); a(f"v_xor_b32 v12, s{sT0}, v12"); a(f"v_add_u32 v12, s{sT1}, v12")
        for i in range(1, 4): a(f"v_xor_b32 v{12+i}, {16*i}, v12")
        a(f"s_lshl_b32 s{sT2}, s{sT2}, 11"); a(f"s_add_u32 s{sT1}, s{sT1}, s{sT2}")
        a(f"v_lshrrev_b32 v{vT0}, 3, v{vL}"); a(f"v_lshlrev_b32 v{vT0}, 4, v{vT0}"); a(f"v_xor_b32 v16, v{vT0}, v{vL16}"); a(f"v_add_u32 v16, s{sT1}, v16")
    if NT:
        g.stamp("ptail")
        prev = None
        for q in (1, 2, 3, 0):
            n = 0; pend = [(prev, i) for i in range(4)] if prev else []
            for pi in range(11 - NT, 11):
                for ks in range(2):
                    if q == 1:
                        if ks == 0: g.wait_lg(("w2f", pi))
                        g.wait_vm(("h", pi, ks))
                    mf2(pi, ks, q >> 1, q & 1)
                    n += 1
                    if pend:
                        if n == 1: a("s_nop 7")
                        elif n == 2: a("s_nop 1"); redw(*pend.pop(0))
                        else: redw(*pend.pop(0))
            while pend: redw(*pend.pop(0))
            prev = q
        g.stamp("G2done")
    else:
        g.stamp("G2done")
        a("s_nop 7")
        for q in (1, 2, 3):
            for i in range(4): redw(q, i)
    a("s_waitcnt lgkmcnt(0)")
    a("s_barrier")
    g.stamp("redbar")
    for i in range(4):
        for q in (1, 2, 3):
            r = 48 + 16*(q-1) + 4*i
            g.lds(f"ds_read_b128 v[{r}:{r+3}], v{8+q} offset:{q*16384 + i*1024}", ("rr", i))
    for i in range(4):
        g.wait_lg(("rr", i))
        for h in (0, 2):
            d = 4*i + h
            a(f"v_pk_add_f32 v[{48+d}:{49+d}], v[{Q0+d}:{Q0+d+1}], v[{48+d}:{49+d}]")
            a(f"v_pk_add_f32 v[{64+d}:{65+d}], v[{64+d}:{65+d}], v[{80+d}:{81+d}]")
        for h in (0, 2):
            d = 4*i + h
            a(f"v_pk_add_f32 v[{48+d}:{49+d}], v[{48+d}:{49+d}], v[{64+d}:{65+d}]")
        for h in (0, 2):
            d = 4*i + h
            a(f"v_cvt_pk_bf16_f32 v{100 + 2*i + h//2}, v{48+d}, v{49+d}")
        if opt.ost >= 2:
            pass
        elif i & 1:
            b = 100 + 2*(i-1)
            a("s_nop 1")
            a(f"v_permlane32_swap_b32 v{b}, v{b+2}"); a(f"v_permlane32_swap_b32 v{b+1}, v{b+3}")
            if opt.ost == 0:
                a(f"buffer_store_dwordx4 v[{b}:{b+3}], v{vOUTO}, {srd(SOUT)}, s{sOUT} offen offset:{(i-1)*16} {opt.outflag}")
        if opt.ost >= 2:
            g.lds(f"ds_write_b64 v{12+(i&3)}, v[{100+2*i}:{101+2*i}]", "tw")
    if opt.ost == 1:
        a("s_nop 1")
        for j in range(4): a(f"v_permlane16_swap_b32 v{100+j}, v{104+j}")
        a(f"buffer_store_dwordx4 v[100:103], v{vOUTO}, {srd(SOUT)}, s{sOUT} offen {opt.outflag}")
        a(f"s_add_u32 s{sOUT}, s{sOUT}, 16384")
        a(f"buffer_store_dwordx4 v[104:107], v{vOUTO}, {srd(SOUT)}, s{sOUT} offen {opt.outflag}")
    if opt.ost == 3:
        a("s_waitcnt lgkmcnt(0)"); a("s_barrier")
    if opt.ost >= 2:
        g.lds("ds_read_b128 v[108:111], v16", "t0"); g.lds("ds_read_b128 v[112:115], v16 offset:1024", "t1")
        a(f"s_add_u32 s{sT0}, s{sOUT}, {16384 if opt.ost == 2 else 8192}")
        g.wait_lg("t0")
        a(f"buffer_store_dwordx4 v[108:111], v{vOUTO}, {srd(SOUT)}, s{sOUT} offen {opt.outflag}")
        g.wait_lg("t1")
        a(f"buffer_store_dwordx4 v[112:115], v{vOUTO}, {srd(SOUT)}, s{sT0} offen {opt.outflag}")
    g.stamp("end")
    if opt.echo:
        a("s_memrealtime s[100:101]"); a("s_waitcnt lgkmcnt(0)")
        a("s_sub_u32 s96, s98, s96"); a(f"s_mul_i32 s96, s96, {opt.echok}"); a("s_add_u32 s96, s96, s100")
        g.lab("L_echo")
        a("s_sleep 1"); a("s_memrealtime s[98:99]"); a("s_waitcnt lgkmcnt(0)")
        a("s_sub_u32 s97, s98, s96"); a("s_cmp_lt_i32 s97, 0"); a("s_cbranch_scc1 L_echo")
    if opt.stamps and opt.stampwave < 4:
        a("s_waitcnt vmcnt(0)")
        g.stamp("end2")
        dump_stamps(SWS)
    g.lab("L_end")
    hdr = open("standalone__dense_activation_gelu__prompt.s.ref").read().split("\n")
    hdr = [l for l in hdr if l.startswith(";") and "@launch" not in l]
    if opt.stamps: hdr.append("; STAMPS " + " ".join(f"{n:>6s}" for n in g.stamps))
    s = "\n".join(hdr) + f"""
; @launch grid=(256,1,1) block=(512,1,1) lds=163840
.amdgcn_target "amdgcn-amd-amdhsa--gfx950"
.text
.globl {KN}
.p2align {opt.align}
.p2align 8
.type {KN},@function
{KN}:
""" + "\n".join(g.L) + f"""
    s_endpgm
.section .rodata,"a"
.p2align 6
.amdhsa_kernel {KN}
  .amdhsa_next_free_vgpr 256
  .amdhsa_next_free_sgpr 102
  .amdhsa_accum_offset 208
  .amdhsa_group_segment_fixed_size 0
  .amdhsa_kernarg_size 64
  .amdhsa_user_sgpr_count 2
  .amdhsa_user_sgpr_kernarg_segment_ptr 1
  .amdhsa_system_sgpr_workgroup_id_x 1
  .amdhsa_float_denorm_mode_32 3
.end_amdhsa_kernel
"""
    return s

def ilist(s): return [int(x) for x in s.split(",")] if s else []
def slist(s): return s.split(",")
def parser():
    ap = argparse.ArgumentParser()
    A = ap.add_argument
    A("-o", default="k.s")
    A("--stamps", type=int, default=0)
    A("--only", type=slist, default=slist("start,B0,B7,gelu0,gelu,flags,g0,val0,S0,p1,p3,p5,ptail,redbar,end2"))
    A("--onlyh", type=slist, default=slist("start,karg,B0,B1,B3,B5,B7,B8,B88,tdone,S0,S1,issued,Bg,B9"))
    A("--stampwave", type=int, default=0)
    A("--D", type=int, default=8)
    A("--bal", type=int, default=1)
    A("--touchat", type=ilist, default=ilist("13,24,35,46"))
    A("--tshift", type=int, default=0)
    A("--trows", type=int, default=11)
    A("--idleat", type=ilist, default=ilist("14,21,28,35,42,49"))
    A("--b8at", type=int, default=71)
    A("--b8c", type=ilist, default=[0, 1])
    A("--pauseat", type=int, default=75)
    A("--pausec", type=ilist, default=[2, 3])
    A("--latew", type=int, default=3)
    A("--w2order", type=ilist, default=ilist("0,1,2,4,3,5,6,7,8,9"))
    A("--tq", type=int, default=0)
    A("--syncs", type=ilist, default=ilist("27,5"))
    A("--twait", type=int, default=-1)
    A("--cap", type=int, default=0)
    A("--capfrom", type=int, default=64)
    A("--capto", type=int, default=75)
    A("--wsoff", type=int, default=0)
    A("--cpf", type=int, default=1)
    A("--align", type=int, default=12)
    A("--pad", type=int, default=0)
    A("--p2split", type=int, default=0)
    A("--abl", type=slist, default=[])
    A("--xfirst", type=int, default=0)
    A("--tlb", type=int, default=0)
    A("--w1flag", default="")
    A("--w2flag", default="")
    A("--w1from", type=int, default=0)
    A("--xfrom", type=int, default=0)
    A("--khalf", type=int, default=0)
    A("--tprep", type=int, default=12)
    A("--diag1", type=int, default=0)
    A("--D0", type=ilist, default=[])
    A("--bldk", type=int, default=-2)
    A("--ost", type=int, default=0)
    A("--biask", type=int, default=5)
    A("--gm", type=ilist, default=[1, 1])
    A("--flag0", type=ilist, default=[2, 1])
    A("--pathx", type=int, default=0)
    A("--poll0", type=ilist, default=[2, 1])
    A("--xf", type=ilist, default=[1, 2])
    A("--p1pos", type=int, default=2)
    A("--poll2", type=int, default=2)
    A("--preflag", type=int, default=1)
    A("--hrot", type=int, default=1)
    A("--nocls", type=int, default=0)
    A("--spin", type=int, default=20000)
    A("--outflag", default="")
    A("--xflag", default="")
    A("--hahead", type=int, default=3)
    A("--hpos", type=ilist, default=ilist("0,2,4,6"))
    A("--wpos", type=ilist, default=ilist("1,3,5,7"))
    A("--d10", type=int, default=0)
    A("--tail", type=int, default=2)
    A("--echo", type=slist, default=None)
    A("--echok", type=int, default=1)
    return ap
if __name__ == "__main__":
    opt = parser().parse_args()
    open(opt.o, "w").write(gen(opt))
```

```python
import sys, argparse, struct

KN = "standalone__dense_activation_gelu__prompt_kernel"
def f32bits(x): return struct.unpack("<I", struct.pack("<f", x))[0]

class Gen:
    def __init__(self, opt):
        self.o = opt; self.L = []; self.vm = []; self.lg = []; self.stamps = {}; self.role = "c"
    def a(self, s): self.L.append("    " + s)
    def lab(self, s): self.L.append(s + ":")
    def vmem(self, s, tag): self.a(s); self.vm.append(tag)
    def lds(self, s, tag): self.a(s); self.lg.append(tag)
    def _cnt(self, lst, tags):
        idx = max(i for i, t in enumerate(lst) if t in tags)
        return len(lst) - 1 - idx
    def wait_vm(self, *tags): self.a(f"s_waitcnt vmcnt({min(self._cnt(self.vm, tags), 63)})")
    def wait_lg(self, *tags): self.a(f"s_waitcnt lgkmcnt({min(self._cnt(self.lg, tags), 15)})")
    def wait2(self, ltag, vtag):
        self.a(f"s_waitcnt vmcnt({min(self._cnt(self.vm, [vtag]), 63)}) lgkmcnt({min(self._cnt(self.lg, [ltag]), 15)})")
    def stamp(self, name):
        o = self.o
        if o.echo and name in o.echo and self.role in ("c", "both"):
            r = 96 + 2*o.echo.index(name)
            self.a(f"s_memrealtime s[{r}:{r+1}]")
        if not o.stamps: return
        want = "h" if o.stampwave >= 4 else "c"
        if self.role not in (want, "both"): return
        if name not in (o.onlyh if want == "h" else o.only): return
        r = STAMP0 + 2*len(self.stamps)
        assert r + 1 <= 101, "too many stamps"
        self.a(f"{'s_memtime' if o.stamps != 2 else 's_memrealtime'} s[{r}:{r+1}]")
        self.stamps[name] = r
        if o.stamps == 3:
            self.a(f"s_memrealtime s[{r+2}:{r+3}]"); self.stamps[name + "_r"] = r + 2

W1ROW = 2752
HUNITS = 48
FLAG_OFF = 0x600000
WS_REC = 0x700000
XBASE = 98304
OOB = 0x7ffffff0
BIG = 0x40000000

sRB1, sJL, sW, sROT = 3, 4, 5, 6
sT0, sT1, sT2 = 7, 8, 9
sW4K, sW3K, sXS, sW1S, sCNT, sOUT = 10, 11, 12, 13, 14, 15
S0, S1, S2, S3, S4 = 32, 36, 40, 44, 48
sNV, sU0, sRB2, sJ2 = 52, 53, 54, 55
sTP0 = 56; sUW = 59; sTM = 70; STAMP0 = 72
sHS = 26
def srd(b): return f"s[{b}:{b+3}]"

vL = 1
vT0, vT1, vL16, vZ = 2, 3, 4, 5
vXd, vW1d, vW2d = 8, 12, 16
vTAG, vTCH = 20, 21
vXa, vWa, vW2a = 8, 12, 6
vH0, vH1, vOUTO, vFZ = 20, 21, 22, 23
vC0, vC1, vONE = 24, 26, 28
vH0x, vH1x = 30, 31
vTG = 15
ACC1 = 32; FR = 80; LX = 128; LW = 144; BFR = 144
GT = 80; GD = 96; vST = 120
HL = 32; NHR = 6
WF = 128; NWF = 4
Q0 = 192

def gen(opt):
    g = Gen(opt); a = g.a
    g.role = "both"
    g.stamp("start")
    a("s_load_dwordx16 s[16:31], s[0:1], 0")
    a(f"s_memrealtime s[{sTM}:{sTM+1}]")
    a("s_cmp_ge_u32 s2, 256")
    a("s_cbranch_scc1 L_end")
    a(f"v_lshrrev_b32 v{vT0}, 6, v0")
    a(f"v_and_b32 v{vL}, 63, v0")
    a(f"s_and_b32 s{sT2}, s2, 1")
    a(f"v_readfirstlane_b32 s{sW}, v{vT0}")
    if opt.cpf == 4:
        a(f"s_getpc_b64 s[{S2}:{S2+1}]")
        g.lab("L_pc")
        a(f"s_lshr_b32 s{sT0}, s2, 3"); a(f"s_lshl_b32 s{sT0}, s{sT0}, 2")
        a(f"s_cmp_ge_u32 s{sW}, 4"); a("s_cbranch_scc1 L_nocpf")
        a(f"s_add_u32 s{sT0}, s{sT0}, s{sW}"); a(f"s_lshl_b32 s{sT0}, s{sT0}, 7")
        a(f"s_min_u32 s{sT0}, s{sT0}, L_end-L_pc-64")
        a(f"s_load_dword s{S3}, s[{S2}:{S2+1}], s{sT0}"); a(f"s_load_dword s{S3+1}, s[{S2}:{S2+1}], s{sT0} offset:64")
        g.lab("L_nocpf")
    a(f"s_bfe_u32 s{sJL}, s2, 0x30003")
    a(f"s_lshr_b32 s{sT0}, s2, 6")
    a(f"s_bfe_u32 s{sT1}, s2, 0x20001")
    a(f"s_lshl_b32 s{sRB1}, s{sT1}, 2"); a(f"s_add_u32 s{sRB1}, s{sRB1}, s{sT0}")
    if opt.khalf: a(f"s_add_u32 s{sROT}, s{sT0}, s{sJL}")
    else: a(f"s_lshl_b32 s{sROT}, s{sT0}, 1"); a(f"s_add_u32 s{sROT}, s{sROT}, s{sJL}")
    a(f"s_mul_i32 s{sU0}, s{sT2}, 22"); a(f"s_mul_i32 s{sT1}, s{sJL}, 3"); a(f"s_add_u32 s{sU0}, s{sU0}, s{sT1}")
    if opt.bal: a(f"s_lshr_b32 s{sT0}, s{sT0}, 1"); a(f"s_xor_b32 s{sT2}, s{sT2}, s{sT0}")
    a(f"s_xor_b32 s{sT2}, s{sT2}, 1")
    a(f"s_cmp_eq_u32 s{sJL}, 7"); a(f"s_cselect_b32 s{sNV}, s{sT2}, 3"); a(f"s_cselect_b32 s{sU0}, 21, s{sU0}")
    if not opt.p2split:
        a(f"s_and_b32 s{sRB2}, s2, 7"); a(f"s_lshl_b32 s{sRB2}, s{sRB2}, 1"); a(f"s_lshr_b32 s{sT1}, s2, 7"); a(f"s_add_u32 s{sRB2}, s{sRB2}, s{sT1}")
        a(f"s_bfe_u32 s{sJ2}, s2, 0x40003")
    elif opt.p2split == 2:
        a(f"s_bfe_u32 s{sRB2}, s2, 0x10002"); a(f"s_lshl_b32 s{sRB2}, s{sRB2}, 3"); a(f"s_lshr_b32 s{sT1}, s2, 5"); a(f"s_add_u32 s{sRB2}, s{sRB2}, s{sT1}")
        a(f"s_and_b32 s{sJ2}, s2, 3"); a(f"s_lshl_b32 s{sJ2}, s{sJ2}, 1"); a(f"s_bfe_u32 s{sT1}, s2, 0x10003"); a(f"s_or_b32 s{sJ2}, s{sJ2}, s{sT1}")
        a(f"s_bfe_u32 s{sT1}, s2, 0x10004"); a(f"s_lshl_b32 s{sT1}, s{sT1}, 3"); a(f"s_or_b32 s{sJ2}, s{sJ2}, s{sT1}")
    else:
        a(f"s_mov_b32 s{sRB2}, s{sRB1}")
        a(f"s_bfe_u32 s{sJ2}, s2, 0x20003"); a(f"s_and_b32 s{sT1}, s2, 1"); a(f"s_lshl_b32 s{sT1}, s{sT1}, 2"); a(f"s_or_b32 s{sJ2}, s{sJ2}, s{sT1}")
        a(f"s_bfe_u32 s{sT1}, s2, 0x10005"); a(f"s_lshl_b32 s{sT1}, s{sT1}, 3"); a(f"s_or_b32 s{sJ2}, s{sJ2}, s{sT1}")
    a(f"v_lshlrev_b32 v{vL16}, 4, v{vL}")
    a(f"v_mov_b32 v{vZ}, 0")
    a(f"s_mov_b32 s{sT2}, s{sW}")
    a(f"s_and_b32 s{sW}, s{sW}, 3")
    a(f"s_lshl_b32 s{sW4K}, s{sW}, 12")
    a(f"s_cmp_lt_u32 s{sT2}, 4")
    a("s_cbranch_scc1 L_compute")

    def mk(b, p, n):
        a(f"s_mov_b32 s{b}, s{p}"); a(f"s_and_b32 s{b+1}, s{p+1}, 0xffff"); a(f"s_mov_b32 s{b+2}, {n}"); a(f"s_mov_b32 s{b+3}, 0x20000")
    def units():
        a(f"s_and_b32 s{sT0}, s{sRB2}, 1"); a(f"s_lshl_b32 s{sT0}, s{sT0}, 1")
        a(f"s_lshr_b32 s{sT1}, s{sJ2}, 3"); a(f"s_add_u32 s{sT2}, s{sT0}, s{sT1}"); a(f"s_cmp_eq_u32 s{sT2}, 3"); a(f"s_cselect_b32 s{sT2}, 0, s{sT2}")
        if opt.nocls: a(f"s_mov_b32 s{sT2}, 0")
        a(f"s_mul_i32 s{sT1}, s{sW}, 3"); a(f"s_add_u32 s{sT1}, s{sT1}, s{sT2}")
        if not opt.hrot:
            a(f"s_lshl_b32 s{sUW}, s{sT1}, 15")
            for pi in range(1, 11):
                a(f"s_add_u32 s{sUW+pi}, s{sUW+pi-1}, {12<<15}"); a(f"s_sub_u32 s{sT1}, s{sUW+pi}, {43<<15}"); a(f"s_cselect_b32 s{sUW+pi}, s{sUW+pi}, s{sT1}")
        else:
            a(f"s_lshl_b32 s{sT2}, s{sT1}, 15")
            for pi in range(11):
                if pi in (4, 8): a(f"s_add_u32 s{sT2}, s{sT2}, {5<<15}")
                if pi == 10: a(f"s_add_u32 s{sUW+pi}, s{sT2}, {24<<15}")
                else:
                    a(f"s_add_u32 s{sT1}, s{sJ2}, {pi}"); a(f"s_and_b32 s{sT1}, s{sT1}, {3 if pi < 8 else 1}")
                    a(f"s_mul_i32 s{sT1}, s{sT1}, {12<<15}"); a(f"s_add_u32 s{sUW+pi}, s{sT2}, s{sT1}")
                a(f"s_sub_u32 s{sT1}, s{sUW+pi}, {43<<15}"); a(f"s_cselect_b32 s{sUW+pi}, s{sUW+pi}, s{sT1}")
    def w2voff():
        a(f"v_lshrrev_b32 v{vT0}, 3, v{vL}"); a(f"v_and_b32 v{vT1}, 7, v{vL}")
        a(f"v_lshlrev_b32 v{vW2d}, 1, v{vT0}"); a(f"v_and_b32 v{vW2d}, 4, v{vW2d}"); a(f"v_xor_b32 v{vW2d}, v{vW2d}, v{vT1}")
        a(f"v_lshlrev_b32 v{vW2d}, 4, v{vW2d}"); a(f"v_lshl_add_u32 v{vW2d}, v{vT0}, 10, v{vW2d}")
        a(f"s_and_b32 s{sT1}, s{sJ2}, 7"); a(f"s_lshl_b32 s{sT1}, s{sT1}, 7"); a(f"v_add_u32 v{vW2d}, s{sT1}, v{vW2d}")
        if "w2" in opt.abl: a(f"v_add_u32 v{vW2d}, 0x20000000, v{vW2d}")
        for q in range(1, 4): a(f"v_add_u32 v{vW2d+q}, {q*7168}, v{vW2d}")
    def w2slot(pi):
        if pi < 4: return pi*16384
        if pi < 8: return XBASE + (pi-4)*16384
        if pi < 10: return 65536 + (pi-8)*16384
        return 0
    def dump_stamps(SWS_):
        a("s_waitcnt lgkmcnt(0)")
        a(f"s_mov_b32 s{SWS_+2}, 0x10000000")
        if opt.stampwave >= 0:
            a(f"v_cmp_eq_u32 vcc, {opt.stampwave*64}, v0"); a(f"s_and_saveexec_b64 s[16:17], vcc"); a("s_cbranch_execz L_end")
            a(f"s_mul_i32 s{sT0}, s2, 128"); a(f"s_add_u32 s{sT0}, s{sT0}, 0x8000000")
        else:
            a("s_mov_b64 exec, 1")
            a(f"s_lshl_b32 s{sT0}, s2, 2"); a(f"s_add_u32 s{sT0}, s{sT0}, s{sW}"); a(f"s_mul_i32 s{sT0}, s{sT0}, 128"); a(f"s_add_u32 s{sT0}, s{sT0}, 0x8000000")
        st = list(g.stamps.values())
        a(f"s_add_u32 s18, s{st[0]}, s{sCNT}"); a(f"s_addc_u32 s19, s{st[0]+1}, 0")
        while len(st) < 15: st.append(st[0])
        st.append(18)
        for i, r in enumerate(st):
            a(f"v_mov_b32 v2, s{r}"); a(f"v_mov_b32 v3, s{r+1}")
            a(f"buffer_store_dwordx2 v[2:3], v{vZ}, {srd(SWS_)}, s{sT0} offen offset:{i*8}")
            a("s_nop 1")

    g.role = "h"; g.vm = []; g.lg = []
    SX, SW1, SW2, SWS, SDBG = S0, S1, S2, S3, S4
    a("s_setprio 1")
    a(f"s_mul_i32 s{sW3K}, s{sW}, 3072")
    a(f"s_cmp_eq_u32 s{sNV}, 0"); a(f"s_cselect_b32 s{sT2}, 0x{BIG:x}, 0")
    def w1voff():
        a(f"s_lshl_b32 s{sT1}, s{sU0}, 6"); a(f"s_mul_i32 s{sT0}, s{sW}, {16*W1ROW}"); a(f"s_add_u32 s{sT1}, s{sT1}, s{sT0}")
        a(f"s_lshl_b32 s{sT0}, s{sNV}, 2")
        a(f"v_mov_b32 v{vTCH}, 0x{BIG:x}")
        for q in range(3):
            a(f"v_add_u32 v{vT0}, {64*q}, v{vL}")
            a(f"v_mul_u32_u24 v{vT1}, 0x5556, v{vT0}"); a(f"v_lshrrev_b32 v{vT1}, 18, v{vT1}")
            a(f"v_mul_u32_u24 v{vW1d+q}, {W1ROW - 192}, v{vT1}")
            a(f"v_mul_u32_u24 v{vT1}, 12, v{vT1}"); a(f"v_sub_u32 v{vT0}, v{vT0}, v{vT1}")
            a(f"v_cmp_gt_u32 vcc, s{sT0}, v{vT0}")
            a(f"v_add3_u32 v{vW1d+q}, v{vW1d+q}, v{vL16}, s{sT1}")
            a(f"s_nop 0")
            a(f"v_cndmask_b32 v{vW1d+q}, v{vTCH}, v{vW1d+q}, vcc")
    if not opt.xfirst: w1voff()
    a(f"s_lshl_b32 s{sT1}, s{sRB1}, 17"); a(f"s_lshl_b32 s{sT0}, s{sW}, 15"); a(f"s_add_u32 s{sT1}, s{sT1}, s{sT0}"); a(f"s_add_u32 s{sT1}, s{sT1}, s{sT2}")
    a(f"v_lshrrev_b32 v{vT0}, 3, v{vL}"); a(f"v_and_b32 v{vT1}, 7, v{vL}")
    a(f"v_lshrrev_b32 v{vXd}, 1, v{vT0}"); a(f"v_xor_b32 v{vXd}, v{vXd}, v{vT1}"); a(f"v_lshlrev_b32 v{vXd}, 4, v{vXd}")
    a(f"v_lshl_add_u32 v{vXd}, v{vT0}, 10, v{vXd}"); a(f"v_add_u32 v{vXd}, s{sT1}, v{vXd}")
    a(f"v_xor_b32 v{vXd+1}, 64, v{vXd}"); a(f"v_add_u32 v{vXd+1}, {7168}, v{vXd+1}")
    a(f"v_add_u32 v{vXd+2}, {2*7168}, v{vXd}"); a(f"v_add_u32 v{vXd+3}, {2*7168}, v{vXd+1}")
    a("s_waitcnt lgkmcnt(0)")
    if "x" in opt.abl:
        for i in range(4): a(f"v_add_u32 v{vXd+i}, 0x20000000, v{vXd+i}")
    if "w1" in opt.abl:
        for i in range(3): a(f"v_add_u32 v{vW1d+i}, 0x20000000, v{vW1d+i}")
    if opt.xfirst: mk(SX, 16, 2097152)
    else: mk(SW1, 18, 1409024); mk(SX, 16, 2097152)
    g.stamp("karg")
    Q = []
    for s in range(8):
        Q += [("w", s, q) for q in range(3)] + [("x", s, p) for p in range(4)]
    if opt.xfirst: Q = Q[3:7] + Q[0:3] + Q[7:]
    for pi in opt.w2order: Q += [("2", pi, q) for q in range(4)]
    if opt.tq: Q = Q[:56] + [("t", 0, r) for r in range(opt.trows)] + Q[56:]
    pre2 = {0: 3, 1: 4, 2: 5, 3: 7, 4: 6, 5: 7, 6: 7, 7: 8, 8: 7, 9: 8}
    bars = set()
    FASTK = not opt.xfirst and opt.khalf != 2
    def kst(s):
        a(f"s_add_u32 s{sT1}, s{sROT}, {s}")
        if opt.khalf:
            a(f"s_and_b32 s{sT1}, s{sT1}, 3")
            if FASTK:
                if s == 0: a(f"s_and_b32 s57, s{sJL}, 4")
                if s == 4: a("s_xor_b32 s57, s57, 4")
                a(f"s_or_b32 s{sT1}, s{sT1}, s57")
            else:
                a(f"s_and_b32 s{sT2}, s{sJL}, 4")
                if s >= 4: a(f"s_xor_b32 s{sT2}, s{sT2}, 4")
                a(f"s_or_b32 s{sT1}, s{sT1}, s{sT2}")
        else: a(f"s_and_b32 s{sT1}, s{sT1}, 7")
    def emit(it, counted=True):
        k, s, p = it
        n0 = len(g.vm)
        emit2(it)
        if not counted: del g.vm[n0:]
    def emit2(it):
        k, s, p = it
        if k == "w":
            if p == 0:
                a(f"s_add_u32 m0, s{sW3K}, {s*12288}")
                kst(s); a(f"s_mul_i32 s{sW1S}, s{sT1}, {64*W1ROW}")
                if FASTK: a(f"s_lshl_b32 s{sXS}, s{sT1}, 7")
            g.vmem(f"buffer_load_dwordx4 v{vW1d+p}, {srd(SW1)}, s{sW1S} offen offset:{p*1024} {opt.w1flag if s >= opt.w1from else ''} lds", ("w", s))
        elif k == "x":
            assert s < 4 or (s-2) in bars, it
            if p == 0:
                a(f"s_add_u32 m0, s{sW4K}, {XBASE + (s & 3)*16384}")
                if FASTK: a("s_nop 0")
                else: kst(s); a(f"s_lshl_b32 s{sXS}, s{sT1}, 7")
            g.vmem(f"buffer_load_dwordx4 v{vXd+p}, {srd(SX)}, s{sXS} offen offset:{p*1024} {opt.xflag if s >= opt.xfrom else ''} lds", ("x", s))
        elif k == "t":
            if p % 4 == 0: a(f"s_movk_i32 s25, {p*1024}")
            g.vmem(f"buffer_load_dwordx4 v[{32+4*p}:{35+4*p}], v{vTCH}, {srd(SW2)}, s25 offen offset:{(p%4)*1024}", "t")
        else:
            assert pre2[s] in bars, it
            if p == 0: a(f"s_add_u32 m0, s{sW4K}, {w2slot(s)}"); a("s_nop 0")
            g.vmem(f"buffer_load_dwordx4 v{vW2d+p}, {srd(SW2)}, s{sUW+s} offen offset:{p*1024} {opt.w2flag} lds", ("2", s))
    jobs = {}
    def at(n, f): jobs.setdefault(n, []).append(f)
    def job_srds():
        mk(SW2, 22, 1409024); mk(SDBG, 28, 256)
        if opt.stamps: mk(SWS, 30, WS_REC); a(f"s_mov_b32 s{sCNT}, 0")
    def job_tagstore():
        a(f"s_lshr_b32 s{sT1}, s2, 3"); a(f"s_and_b32 s{sT2}, s2, {3 if opt.p2split == 2 else 1}"); a(f"s_or_b32 s{sT1}, s{sT1}, s{sT2}"); a(f"s_or_b32 s{sT1}, s{sT1}, s{sW}")
        a(f"s_cselect_b32 s{sT1}, 0x{OOB:x}, 0"); a(f"v_mov_b32 v{vT0}, s{sT1}")
        a(f"s_or_b32 s{sT1}, s{sTM}, 1"); a(f"v_mov_b32 v{vTAG}, s{sT1}"); a(f"s_lshr_b32 s{sT2}, s{sRB1}, {3 if opt.p2split == 2 else 2}"); a(f"s_lshl_b32 s{sT2}, s{sT2}, 6")
        a("s_mov_b64 exec, 1")
        g.vmem(f"buffer_store_dword v{vTAG}, v{vT0}, {srd(SDBG)}, s{sT2} offen sc0 sc1", "tagst")
        a("s_mov_b64 exec, -1")
    def job_bar(s):
        def f():
            if s <= 7: g.wait_vm(("w", s), ("x", s))
            if s == 88:
                if opt.ne: g.wait_vm(("2", opt.w2order[opt.ne-1]))
                else: a("s_waitcnt vmcnt(0)")
            a("s_barrier"); bars.add(s); g.stamp(f"B{s}")
        return f
    if opt.xfirst: at(3, lambda: (mk(SW1, 18, 1409024), w1voff()))
    if opt.diag1:
        def dj():
            g.stamp("iss")
            for n in range(opt.diag1, -1, -1): a(f"s_waitcnt vmcnt({n})"); g.stamp(f"v{n}")
        at(opt.diag1, dj)
    at(9, job_srds); at(9, job_tagstore); at(10, units); at(11, w2voff); at(11, lambda: a("s_setprio 0"))
    for s in range(8): at(7*s + 6 + (opt.D0[s] if s < len(opt.D0) else opt.D), job_bar(s))
    at(opt.b8at, job_bar(8))
    if not opt.tq: at(opt.pauseat, job_bar(88))
    else:
        n0 = 56 + opt.trows
        def job_sync(i, nu):
            def f():
                g.wait_vm(("2", opt.w2order[nu-1])); a("s_barrier"); g.stamp(f"S{i}")
            return f
        for i in range(0, len(opt.syncs), 2): at(n0 + opt.syncs[i], job_sync(i//2, opt.syncs[i+1]))
    if opt.touchat or opt.tq:
        ng = max(1, len(opt.touchat))
        TR = opt.trows
        def job_tprep():
            a(f"s_lshr_b32 s{sT0}, s2, 3"); a(f"s_mul_i32 s{sT1}, s{sT0}, {4*TR}"); a(f"s_mul_i32 s{sT2}, s{sW}, {TR}"); a(f"s_add_u32 s{sT1}, s{sT1}, s{sT2}")
            a(f"s_lshl_b32 s{sT1}, s{sT1}, 10")
            if not opt.p2split: a(f"v_add_u32 v{vTCH}, s{sT1}, v{vL16}")
            elif opt.p2split == 2:
                a(f"s_and_b32 s{sT2}, s2, 3"); a(f"s_lshl_b32 s{sT2}, s{sT2}, 8"); a(f"s_add_u32 s{sT1}, s{sT1}, s{sT2}")
                a(f"v_and_b32 v{vT0}, 0x300, v{vL16}"); a(f"v_mul_u32_u24 v{vT0}, 3, v{vT0}"); a(f"v_add3_u32 v{vTCH}, s{sT1}, v{vL16}, v{vT0}")
            else:
                a(f"s_and_b32 s{sT2}, s2, 1"); a(f"s_lshl_b32 s{sT2}, s{sT2}, 9"); a(f"s_add_u32 s{sT1}, s{sT1}, s{sT2}")
                a(f"v_and_b32 v{vT0}, 512, v{vL16}"); a(f"v_add3_u32 v{vTCH}, s{sT1}, v{vL16}, v{vT0}")
            if opt.sm[1] > opt.sm[0]: a(f"s_min_u32 s24, s{sT1}, {1409024 - 12288}")
            a(f"s_lshr_b32 s{sT0}, s{sT0}, {opt.tshift}"); a(f"s_and_b32 s{sOUT}, s{sT0}, {ng-1}")
        at(opt.tprep, job_tprep)
        def job_touch(gi):
            def f():
                a(f"s_cmp_lg_u32 s{sOUT}, {gi}"); a(f"s_cbranch_scc1 L_nt{gi}")
                if opt.khalf == 2:
                    for q in range(3): emit(("w", 4, q), False)
                for r in range(opt.sm[1], TR, [1, 2, 4][opt.p2split]):
                    if r >= 4 and (r % 4 == 0 or r == opt.sm[1]): a(f"s_movk_i32 s{sT0}, {(r//4)*4096}")
                    a(f"buffer_load_dwordx4 v[{32+4*r}:{35+4*r}], v{vTCH}, {srd(SW2)}, {'0' if r < 4 else f's{sT0}'} offen offset:{(r%4)*1024}")
                g.lab(f"L_nt{gi}")
            return f
        if opt.sm[1] < TR:
            for gi, n in enumerate(opt.touchat): at(n, job_touch(gi))
        if opt.sm[1] > opt.sm[0]:
            sec = [(r, c) for r in range(opt.sm[0], opt.sm[1]) for c in range(8)]
            def job_sm(n):
                def f():
                    for _ in range(n):
                        if sec:
                            r, c = sec.pop(0)
                            a(f"s_buffer_load_dword s{16 + len(sec) % 6}, {srd(SW2)}, s24 offset:{r*1024 + c*64}")
                return f
            at(opt.tprep, job_sm(opt.smb))
            for n in range(opt.smfrom, 70): at(n, job_sm(1))
        REM = 1376 - 128*TR
        if REM > 0:
            assert opt.bal
            per = -(-REM // 8)
            def job_iprep():
                a(f"s_bfe_u32 s{sT0}, s2, 0x10006"); a(f"s_lshl_b32 s{sT0}, s{sT0}, 2"); a(f"s_add_u32 s{sT0}, s{sT0}, s{sW}")
                a(f"s_mul_i32 s{sT0}, s{sT0}, {per}"); a(f"s_add_u32 s{sT0}, s{sT0}, {128*TR}"); a(f"s_lshl_b32 s24, s{sT0}, 10")
            at(12, job_iprep)
            chunks = len(opt.idleat); cs = -(-per // chunks)
            def job_idle(ci):
                def f():
                    a(f"s_cmp_lg_u32 s{sNV}, 0"); a(f"s_cbranch_scc1 L_ni{ci}")
                    for r in range(ci*cs, min(per, (ci+1)*cs)):
                        if r % 4 == 0 or r == ci*cs: a(f"s_add_u32 s{sT0}, s24, {(r//4)*4096}")
                        a(f"buffer_load_dwordx4 v[{32+4*(r%16)}:{35+4*(r%16)}], v{vL16}, {srd(SW2)}, s{sT0} offen offset:{(r%4)*1024}")
                    g.lab(f"L_ni{ci}")
                return f
            for ci, n in enumerate(opt.idleat): at(n, job_idle(ci))
    for n, it in enumerate(Q):
        if opt.cap and opt.capfrom <= n <= opt.capto: a(f"s_waitcnt vmcnt({opt.cap-1})")
        if opt.tq and n == 56 + opt.trows and opt.twait >= 0: a(f"s_waitcnt vmcnt({opt.twait})"); g.stamp("tdone")
        if not (opt.khalf == 2 and it[:2] == ("w", 4)): emit(it)
        for f in jobs.get(n, []): f()
    g.stamp("issued")
    a(f"s_cmp_eq_u32 s{sW}, 3"); a(f"s_cselect_b32 s{sT1}, 0x{BIG:x}, 0")
    for i in range(4): a(f"v_add_u32 v{vW2d+i}, s{sT1}, v{vW2d+i}")
    a(f"s_waitcnt vmcnt({4*opt.latew})"); a("s_barrier"); g.stamp("Bg")
    pre2[10] = 8
    for q in range(4): emit(("2", 10, q))
    if opt.latew:
        a("s_waitcnt vmcnt(4)"); a("s_barrier")
    a("s_waitcnt vmcnt(0)")
    a("s_barrier")
    g.stamp("B9")
    if opt.stamps and opt.stampwave >= 4: dump_stamps(SWS)
    a("s_endpgm")

    g.lab("L_compute")
    g.role = "c"; g.vm = []; g.lg = []
    SWS, SOUT, SW2, SB1, SB2 = S0, S1, S2, S3, S4
    G = opt.G
    sFS = [24, 25, 29]; sFLc = 30; sTG = 12; sTGO = 11; sFV = 16; sC3 = 31
    if opt.cpf == 1:
        a(f"s_getpc_b64 s[{S0}:{S0+1}]")
        g.lab("L_pc")
        a(f"s_lshr_b32 s{sT0}, s2, 3"); a(f"s_lshl_b32 s{sT0}, s{sT0}, 2"); a(f"s_add_u32 s{sT0}, s{sT0}, s{sW}"); a(f"s_lshl_b32 s{sT0}, s{sT0}, 7")
        a(f"s_min_u32 s{sT0}, s{sT0}, L_end-L_pc-64")
        a(f"s_load_dword s{S1}, s[{S0}:{S0+1}], s{sT0}"); a(f"s_load_dword s{S1+1}, s[{S0}:{S0+1}], s{sT0} offset:64")
    if opt.cpf == 3:
        a(f"s_getpc_b64 s[{S0}:{S0+1}]")
        g.lab("L_pc")
        a(f"s_sub_u32 s{S0}, s{S0}, L_pc-{KN}"); a(f"s_subb_u32 s{S0+1}, s{S0+1}, 0")
        a(f"s_lshr_b32 s{sT0}, s2, 3"); a(f"s_lshl_b32 s{sT0}, s{sT0}, 2"); a(f"s_add_u32 s{sT0}, s{sT0}, s{sW}"); a(f"s_lshl_b32 s{sT0}, s{sT0}, 7")
        a(f"s_min_u32 s{sT0}, s{sT0}, L_end-{KN}-64")
        a(f"s_load_dword s{S1}, s[{S0}:{S0+1}], s{sT0}"); a(f"s_load_dword s{S1+1}, s[{S0}:{S0+1}], s{sT0} offset:64")
    def cpf():
        a(f"s_getpc_b64 s[{sTM}:{sTM+1}]")
        g.lab("L_pc")
        a(f"s_lshr_b32 s{sT0}, s2, 3"); a(f"s_lshl_b32 s{sT0}, s{sT0}, 2"); a(f"s_add_u32 s{sT0}, s{sT0}, s{sW}"); a(f"s_lshl_b32 s{sT0}, s{sT0}, 7")
        a(f"s_min_u32 s{sT0}, s{sT0}, L_end-L_pc-64")
        a(f"s_load_dword s{sFV+4}, s[{sTM}:{sTM+1}], s{sT0}"); a(f"s_load_dword s{sFV+5}, s[{sTM}:{sTM+1}], s{sT0} offset:64")
    a(f"s_and_b32 s{sT0}, s{sRB1}, 1"); a(f"s_lshl_b32 s{sT0}, s{sT0}, 1")
    a(f"s_lshr_b32 s{sT1}, s{sW}, 1"); a(f"s_add_u32 s{sT0}, s{sT0}, s{sT1}"); a(f"s_cmp_eq_u32 s{sT0}, 3"); a(f"s_cselect_b32 s13, 0, s{sT0}")
    if opt.nocls: a("s_mov_b32 s13, 0")
    a(f"s_add_u32 s{sT0}, s13, 45"); a(f"s_sub_u32 s{sT0}, s{sT0}, s{sU0}")
    a(f"s_mul_i32 s{sT1}, s{sT0}, 43"); a(f"s_lshr_b32 s{sT1}, s{sT1}, 7"); a(f"s_mul_i32 s{sT1}, s{sT1}, 3"); a(f"s_sub_u32 s{sTP0}, s{sT0}, s{sT1}")
    for p in (1, 2):
        a(f"s_sub_u32 s{sTP0+p}, s{sTP0+p-1}, 1"); a(f"s_cselect_b32 s{sTP0+p}, 2, s{sTP0+p}")
    a(f"v_and_b32 v{vT0}, 31, v{vL}"); a(f"v_lshrrev_b32 v{vT1}, 5, v{vL}")
    a(f"v_lshrrev_b32 v{vXa}, 1, v{vT0}"); a(f"v_and_b32 v{vXa}, 7, v{vXa}"); a(f"v_xor_b32 v{vXa}, v{vXa}, v{vT1}"); a(f"v_lshlrev_b32 v{vXa}, 4, v{vXa}")
    a(f"v_lshl_add_u32 v{vXa}, v{vT0}, 7, v{vXa}")
    a(f"s_add_u32 s{sT1}, s{sW4K}, {XBASE}"); a(f"v_add_u32 v{vXa}, s{sT1}, v{vXa}")
    for ks in range(1, 4): a(f"v_xor_b32 v{vXa+ks}, {32*ks}, v{vXa}")
    if opt.ost == 0:
        a(f"v_lshlrev_b32 v{vOUTO}, 10, v{vT0}"); a(f"v_lshl_add_u32 v{vOUTO}, v{vT1}, 4, v{vOUTO}")
    elif opt.ost == 1:
        a(f"v_and_b32 v{vOUTO}, 15, v{vL}"); a(f"v_lshlrev_b32 v{vOUTO}, 10, v{vOUTO}"); a(f"v_lshl_add_u32 v{vOUTO}, v{vT1}, 4, v{vOUTO}")
        a(f"v_bfe_u32 v{vH0}, v{vL}, 4, 1"); a(f"v_lshl_add_u32 v{vOUTO}, v{vH0}, 5, v{vOUTO}")
    elif opt.ost == 3:
        a(f"v_lshrrev_b32 v{vOUTO}, 3, v{vL}"); a(f"v_lshlrev_b32 v{vOUTO}, 10, v{vOUTO}"); a(f"v_and_b32 v{vH0}, 7, v{vL}"); a(f"v_lshl_add_u32 v{vOUTO}, v{vH0}, 4, v{vOUTO}")
        a(f"s_and_b32 s{sT1}, s{sW}, 1"); a(f"s_mul_i32 s{sT1}, s{sT1}, {16384-64}"); a(f"v_add_u32 v{vOUTO}, s{sT1}, v{vOUTO}")
    else:
        a(f"v_lshrrev_b32 v{vOUTO}, 2, v{vL}"); a(f"v_lshlrev_b32 v{vOUTO}, 10, v{vOUTO}"); a(f"v_and_b32 v{vH0}, 3, v{vL}"); a(f"v_lshl_add_u32 v{vOUTO}, v{vH0}, 4, v{vOUTO}")
    R = vH0
    a(f"v_bfe_u32 v{vT0}, v{vL}, 4, 1"); a(f"v_lshlrev_b32 v{vT0}, 5, v{vT0}"); a(f"v_and_b32 v{R}, 3, v{vL}"); a(f"v_lshl_add_u32 v{vT0}, v{R}, 3, v{vT0}")
    a(f"v_bfe_u32 v{R}, v{vL}, 2, 2")
    a(f"v_lshl_add_u32 v{vWa}, v{vT1}, 3, v{R}"); a(f"v_mul_u32_u24 v{vWa}, 192, v{vWa}"); a(f"v_add_u32 v{vWa}, v{vWa}, v{vT0}")
    for p in (2, 1, 0):
        a(f"s_lshl_b32 s{sT1}, s{sTP0+p}, 6"); a(f"v_add_u32 v{vWa+p}, s{sT1}, v{vWa}")
    a(f"v_lshl_add_u32 v{vW2a}, v{vT1}, 2, v{R}"); a(f"v_lshl_add_u32 v{vW2a}, v{vW2a}, 7, v{vT0}")
    a(f"v_lshrrev_b32 v{R}, 1, v{R}"); a(f"s_lshr_b32 s{sT1}, s{sW}, 1"); a(f"v_xor_b32 v{R}, s{sT1}, v{R}")
    a(f"v_lshl_add_u32 v{vW2a}, v{R}, 6, v{vW2a}"); a(f"s_lshl_b32 s{sT1}, s{sT1}, 12"); a(f"v_add_u32 v{vW2a}, s{sT1}, v{vW2a}")
    a(f"v_xor_b32 v{vW2a+1}, 64, v{vW2a}")
    a(f"v_cmp_gt_u32 vcc, 32, v{vL}"); a(f"v_mov_b32 v{vT0}, 0x3f80"); a(f"v_lshlrev_b32 v{vT1}, 1, v{vL}"); a(f"v_cndmask_b32 v{BFR+16}, 0, v{vT0}, vcc")
    a(f"v_mov_b32 v{vT0}, 0x{OOB:x}"); a(f"v_cndmask_b32 v{vFZ}, v{vT0}, v{vT1}, vcc")
    for p in range(3):
        a(f"s_add_u32 s{sT1}, s{sU0}, s{sTP0+p}"); a(f"s_lshl_b32 s{sT1}, s{sT1}, 6"); a(f"v_add_u32 v{BFR+4*p}, s{sT1}, v{vFZ}")
    a(f"s_and_b32 s{sT1}, s{sJ2}, 7"); a(f"s_lshl_b32 s{sT1}, s{sT1}, 7"); a(f"s_lshr_b32 s{sT2}, s{sW}, 1"); a(f"s_lshl_b32 s{sT2}, s{sT2}, 6"); a(f"s_add_u32 s{sOUT}, s{sT1}, s{sT2}")
    a(f"v_add_u32 v{BFR+12}, s{sOUT}, v{vFZ}")
    a("s_waitcnt lgkmcnt(0)")
    mk(SB1, 20, 2752); mk(SB2, 24, 1024)
    if opt.wsoff:
        a(f"s_add_u32 s30, s30, 0x{opt.wsoff<<20:x}"); a("s_addc_u32 s31, s31, 0")
    mk(SWS, 30, WS_REC); mk(SOUT, 26, 2097152)
    a("s_mov_b64 s[0:1], s[28:29]")
    a(f"s_mov_b32 s{sC3}, s13")
    if opt.cpf == 2: cpf()
    g.stamp("karg")
    a(f"s_lshl_b32 s{sT0}, s{sRB2}, 1"); a(f"s_lshr_b32 s{sT1}, s{sJ2}, 3"); a(f"s_add_u32 s{sT0}, s{sT0}, s{sT1}"); a(f"s_lshl_b32 s{sT0}, s{sT0}, 10")
    a(f"s_lshl_b32 s{sT1}, s{sW}, 8"); a(f"s_add_u32 s{sT0}, s{sT0}, s{sT1}"); a(f"s_add_u32 s{sFLc}, s{sT0}, {FLAG_OFF}")
    if opt.preflag:
        for i in range(3): a(f"s_buffer_load_dword s{sFV+i}, {srd(SWS)}, s{sFLc} offset:{64*i} glc")
    if opt.sm[0]:
        a(f"s_lshr_b32 s{sT0}, s2, 3"); a(f"s_mul_i32 s{sT1}, s{sT0}, 44"); a(f"s_mul_i32 s{sT2}, s{sW}, 11"); a(f"s_add_u32 s{sT1}, s{sT1}, s{sT2}"); a(f"s_lshl_b32 s{sT1}, s{sT1}, 10")
        a(f"s_and_b32 s{sT2}, s2, 1"); a(f"s_lshl_b32 s{sT2}, s{sT2}, 9"); a(f"s_add_u32 s{sT1}, s{sT1}, s{sT2}")
        a(f"s_min_u32 s{sT1}, s{sT1}, {1409024 - 4096}")
        for r in range(opt.sm[0]):
            for c in range(8): a(f"s_buffer_load_dword s{19 + c % 5}, {srd(SW2)}, s{sT1} offset:{r*1024 + c*64}")
    cut = len(g.L)
    for p in range(5):
        for k in range(1, 4): a(f"v_mov_b32 v{BFR+4*p+k}, 0")
    a(f"s_lshl_b32 s{sT0}, s{sRB1}, 2"); a(f"s_add_u32 s{sT0}, s{sT0}, s{sW}"); a(f"s_mul_i32 s{sT0}, s{sT0}, {HUNITS}"); a(f"s_add_u32 s{sT0}, s{sT0}, s{sU0}")
    for p in range(3):
        a(f"s_add_u32 s{sT1}, s{sT0}, s{sTP0+p}"); a(f"s_lshl_b32 s{sHS+p}, s{sT1}, 11")
    a(f"s_and_b32 s{sT0}, s{sRB2}, 1"); a(f"s_lshl_b32 s{sT0}, s{sT0}, 1")
    a(f"s_lshr_b32 s{sT1}, s{sJ2}, 3"); a(f"s_add_u32 s{sT2}, s{sT0}, s{sT1}"); a(f"s_cmp_eq_u32 s{sT2}, 3"); a(f"s_cselect_b32 s{sT2}, 0, s{sT2}")
    if opt.nocls: a(f"s_mov_b32 s{sT2}, 0")
    a(f"s_lshr_b32 s{sT1}, s{sW}, 1"); a(f"s_mul_i32 s{sT1}, s{sT1}, 3"); a(f"s_add_u32 s{sT1}, s{sT1}, s{sT2}"); a(f"s_lshl_b32 s{sUW}, s{sT1}, 11")
    a(f"s_lshr_b32 s{sTGO}, s{sRB1}, {3 if opt.p2split == 2 else 2}"); a(f"s_lshl_b32 s{sTGO}, s{sTGO}, 6")
    a(f"s_lshl_b32 s{sT0}, s{sRB1}, 1"); a(f"s_lshr_b32 s{sT1}, s{sW}, 1"); a(f"s_add_u32 s{sT0}, s{sT0}, s{sT1}"); a(f"s_lshl_b32 s{sT0}, s{sT0}, 10")
    a(f"s_and_b32 s{sT1}, s{sW}, 1"); a(f"s_lshl_b32 s{sT1}, s{sT1}, 8"); a(f"s_add_u32 s{sT0}, s{sT0}, s{sT1}"); a(f"s_add_u32 s{sT0}, s{sT0}, {FLAG_OFF}")
    a(f"s_sub_u32 s13, s{sU0}, s{sC3}"); a(f"s_add_u32 s13, s13, 43")
    for p in range(3):
        a(f"s_add_u32 s{sT1}, s13, s{sTP0+p}"); a(f"s_mul_i32 s{sT1}, s{sT1}, 29")
        a(f"s_mul_hi_u32 s{sT2}, s{sT1}, 99882961"); a(f"s_mul_i32 s{sT2}, s{sT2}, 43"); a(f"s_sub_u32 s{sT1}, s{sT1}, s{sT2}")
        a(f"s_cmp_lt_u32 s{sTP0+p}, s{sNV}"); a(f"s_cselect_b32 s{sT1}, s{sT1}, 64")
        a(f"s_and_b32 s{sT2}, s{sT1}, 1"); a(f"s_lshl_b32 s{sT2}, s{sT2}, 9"); a(f"s_add_u32 s{sFS[p]}, s{sT2}, s{sT0}")
        a(f"s_and_b32 s{sT2}, s{sT1}, 0x7e"); a(f"s_lshl_b32 s{sT2}, s{sT2}, 1"); a(f"s_add_u32 s{sFS[p]}, s{sFS[p]}, s{sT2}")
        a(f"s_cmp_ge_u32 s{sT1}, {2*G}"); a(f"s_cselect_b32 s{sT2}, {64-4*G}, 0"); a(f"s_add_u32 s{sFS[p]}, s{sFS[p]}, s{sT2}")
        a(f"s_cmp_ge_u32 s{sT1}, {4*G}"); a(f"s_cselect_b32 s{sT2}, {64-4*G}, 0"); a(f"s_add_u32 s{sFS[p]}, s{sFS[p]}, s{sT2}")
    def biasld():
        for p in range(3): g.vmem(f"buffer_load_ushort v{BFR+4*p}, v{BFR+4*p}, {srd(SB1)}, 0 offen", "b1")
        g.vmem(f"buffer_load_ushort v{BFR+12}, v{BFR+12}, {srd(SB2)}, 0 offen", "b2")
    if opt.bldk == -2: biasld()
    c0 = -2.0*0.7978845608028654*1.4426950408889634; c1 = c0*0.044715
    for r, v in ((vC0, f32bits(c0)), (vC1, f32bits(c1)), (vONE, 0x3f800000)):
        a(f"v_mov_b32 v{r}, 0x{v:08x}"); a(f"v_mov_b32 v{r+1}, v{r}")
    a(f"s_lshl_b32 s{sT0}, s{sRB2}, 2"); a(f"s_lshr_b32 s{sT1}, s{sJ2}, 3"); a(f"s_lshl_b32 s{sT1}, s{sT1}, 1"); a(f"s_add_u32 s{sT0}, s{sT0}, s{sT1}")
    a(f"s_and_b32 s{sT1}, s{sW}, 1"); a(f"s_add_u32 s{sT2}, s{sT0}, s{sT1}"); a(f"s_mul_i32 s{sT1}, s{sT2}, {HUNITS*2048}"); a(f"v_add_u32 v{vH0}, s{sT1}, v{vL16}")
    a(f"s_lshl_b32 s{sT1}, s{sT2}, 15"); a(f"s_add_u32 s{sOUT}, s{sOUT}, s{sT1}")
    a(f"s_cmp_ge_u32 s{sW}, 2"); a(f"s_cselect_b32 s{sT1}, 0x{BIG:x}, 0")
    a(f"v_add_u32 v{vH0x}, s{sT1}, v{vH0}")
    if opt.tlb:
        a("s_mov_b64 exec, 1")
        a(f"s_movk_i32 s{sT0}, 0x5c00"); a(f"s_lshl_b32 s{sT0}, s{sT0}, 2")
        if opt.tlb & 1: g.vmem(f"buffer_load_dword v{vT0}, v{vH0}, {srd(SWS)}, s{sT0} offen", "tlb")
        if opt.tlb & 2: g.vmem(f"buffer_load_dword v{vT0}, v{vZ}, {srd(SOUT)}, s{sOUT} offen", "tlb")
        if opt.tlb & 4: g.vmem(f"buffer_load_dword v{vT0}, v{vZ}, {srd(SWS)}, s{sFLc} offen offset:192", "tlb")
        a("s_mov_b64 exec, -1")
    a(f"s_mov_b32 s{sCNT}, 0")
    a(f"v_mov_b32 v{vFZ}, 0")
    UT = list(range(sUW, sUW+11)) + list(range(40, 51))
    if opt.utab:
        assert opt.defer and opt.bldk <= 2
        for t in range(1, 22):
            a(f"s_add_u32 s{UT[t]}, s{UT[t-1]}, {6<<11}"); a(f"s_sub_u32 s{sT0}, s{UT[t]}, {43<<11}"); a(f"s_cselect_b32 s{UT[t]}, s{UT[t]}, s{sT0}")
    defer = []
    if opt.defer:
        assert opt.bldk >= 0 and not opt.tlb
        defer = g.L[cut:]; del g.L[cut:]
    def drip(n):
        for _ in range(n):
            if defer: g.L.append(defer.pop(0))
    def acc1(p): return f"v[{ACC1+16*p}:{ACC1+16*p+15}]"
    def acc2(q): return f"v[{Q0}:{Q0+15}]" if q == 0 else f"a[{16*(q-1)}:{16*(q-1)+15}]"
    def biasmf():
        g.wait_vm("b1", "b2")
        for p in range(3):
            a(f"v_mfma_f32_32x32x16_bf16 {acc1(p)}, v[{BFR+4*p}:{BFR+4*p+3}], v[{BFR+16}:{BFR+19}], {acc1(p)}")
        a(f"v_mfma_f32_32x32x16_bf16 {acc2(0)}, v[{BFR+12}:{BFR+15}], v[{BFR+16}:{BFR+19}], 0")
    def tagload(): a(f"s_load_dword s{sTG}, s[0:1], s{sTGO}")
    def tagcheck():
        g.lab("L_tag")
        a("s_waitcnt lgkmcnt(0)")
        a(f"s_cmp_lg_u32 s{sTG}, 0"); a("s_cbranch_scc1 L_tagok")
        a("s_sleep 8")
        a(f"s_load_dword s{sTG}, s[0:1], s{sTGO} glc")
        a(f"s_add_u32 s{sCNT}, s{sCNT}, 1"); a(f"s_cmp_lt_u32 s{sCNT}, {opt.spin}"); a("s_cbranch_scc1 L_tag")
        a("s_waitcnt lgkmcnt(0)")
        g.lab("L_tagok")
        a(f"s_mov_b32 s{sTG+1}, s{sTG}"); a(f"v_mov_b32 v{vTG}, s{sTG}")
    def hflag(p):
        if "ack" not in opt.abl: g.wait_vm(("hst", p))
        a("s_mov_b64 exec, 1")
        g.vmem(f"buffer_store_dword v{vTG}, v{vFZ}, {srd(SWS)}, s{sFS[p]} offen sc1", ("flag", p))
        a("s_mov_b64 exec, -1")
        if f"f{p}" not in g.stamps: g.stamp(f"f{p}")
    def fpoll(n):
      if "poll" not in opt.abl: a(f"s_buffer_load_dwordx8 s[{sFV}:{sFV+7}], {srd(SWS)}, s{sFLc} offset:{64*n} glc")
    def fcmp(n):
        a("s_waitcnt lgkmcnt(0)")
        cnt = G if n < 2 else 22 - 2*G
        np_ = (cnt + 1)//2
        if cnt & 1: a(f"s_mov_b32 s{sFV+cnt}, s{sTG}")
        if n == 2:
            a(f"s_cmp_ge_u32 s{sW}, 2"); a(f"s_cselect_b32 s{sFV+cnt-1}, s{sTG}, s{sFV+cnt-1}")
        for i in range(np_): a(f"s_xor_b64 s[{sFV+2*i}:{sFV+2*i+1}], s[{sFV+2*i}:{sFV+2*i+1}], s[{sTG}:{sTG+1}]")
        for i in range(1, np_): a(f"s_or_b64 s[{sFV}:{sFV+1}], s[{sFV}:{sFV+1}], s[{sFV+2*i}:{sFV+2*i+1}]")
    def fgate(n):
        g.stamp(f"a{n}")
        g.lab(f"L_fg{n}")
        fcmp(n)
        a(f"s_cbranch_scc0 L_fgok{n}" if "gate" not in opt.abl else f"s_branch L_fgok{n}")
        fpoll(n)
        a(f"s_add_u32 s{sCNT}, s{sCNT}, {1 if not opt.stamps else 10**n}"); a(f"s_cmp_lt_u32 s{sCNT}, {opt.spin}"); a(f"s_cbranch_scc1 L_fg{n}")
        a("s_waitcnt lgkmcnt(0)")
        g.lab(f"L_fgok{n}")
        if n: g.stamp(f"g{n}")
    if opt.pad:
        a("s_branch L_pad0")
        g.lab("L_padret")
    if opt.bldk == -1: biasld()
    g.stamp("ready")

    def fx(k): return FR + 16*(k % 3)
    def fw(k, p): return FR + 16*(k % 3) + 4 + 4*p
    def reads(k, regx=None, regw=None):
        s, ks = divmod(k, 4)
        out = []
        rx = fx(k) if regx is None else regx
        out.append(lambda: g.lds(f"ds_read_b128 v[{rx}:{rx+3}], v{vXa+ks} offset:{(s&3)*16384}", ("fx", k)))
        for p in range(3):
            for half in range(2):
                rw = (fw(k, p) if regw is None else regw(p)) + 2*half
                off = ((s & 3)*64 + 16*ks + 4*half)*192
                out.append(lambda rw=rw, off=off, p=p: g.lds(f"ds_read_b64_tr_b16 v[{rw}:{rw+1}], v{vWa+p} offset:{off}", ("fw", k, p)))
        return out
    def barrier(s):
        if s == 4:
            for p in range(3): a(f"v_add_u32 v{vWa+p}, {4*64*192}, v{vWa+p}")
        a("s_barrier")
        g.stamp(f"B{s}")
    def mf1(k, p, rw=None, rx=None):
        rw = fw(k, p) if rw is None else rw; rx = fx(k) if rx is None else rx
        a(f"v_mfma_f32_32x32x16_bf16 {acc1(p)}, v[{rw}:{rw+3}], v[{rx}:{rx+3}], {acc1(p) if k else 0}")
    barrier(0)
    for t in reads(0) + reads(1): t()
    NK = 28
    for k in range(NK):
        nxt = []
        if k + 2 < NK:
            if (k+2) % 4 == 0: barrier((k+2)//4)
            nxt = reads(k+2)
        g.wait_lg(("fx", k), ("fw", k, 0))
        mf1(k, 0)
        for t in nxt[:3]: t()
        drip(opt.defer - 1)
        g.wait_lg(("fw", k, 1))
        mf1(k, 1)
        for t in nxt[3:5]: t()
        drip(opt.defer)
        g.wait_lg(("fw", k, 2))
        mf1(k, 2)
        for t in nxt[5:]: t()
        drip(opt.defer)
        if k % 4 == 1: drip(opt.deferb)
        if k == opt.bldk: biasld()
        if k == opt.biask: biasmf()
        if opt.tagk and k == opt.tagk:
            assert not defer
            tagload()
    drip(1000)
    if opt.tagk: tagcheck()
    for p in range(3):
        a(f"s_cmp_lt_u32 s{sTP0+p}, s{sNV}"); a(f"s_cselect_b32 s{sT1}, {0 if 'hst' not in opt.abl else '2.0'}, 0x{BIG:x}"); a(f"v_add_u32 v{vST+p}, s{sT1}, v{vL16}")
    barrier(7)
    allr = {}
    for k in range(28, 32):
        allr[k] = reads(k, regx=LX + 4*(k-28), regw=lambda p, k=k: LW + 16*p + 4*(k-28))
    for k in range(28, 32):
        allr[k][0](); allr[k][1](); allr[k][2]()
    later = []
    for p in (1, 2):
        for k in range(28, 32): later += [allr[k][1+2*p], allr[k][2+2*p]]
    for k in range(28, 32):
        g.wait_lg(("fx", k), ("fw", k, 0))
        mf1(k, 0, LW + 4*(k-28), LX + 4*(k-28))
        for t in later[:4]: t()
        later = later[4:]
    rest = [(p, k) for p in (1, 2) for k in range(28, 32)]
    def restmf(n):
        for _ in range(n):
            if not rest: return
            p, k = rest.pop(0)
            g.wait_lg(("fw", k, p))
            mf1(k, p, LW + 16*p + 4*(k-28), LX + 4*(k-28))
    restmf(opt.pre); a("s_nop 5")
    g.stamp("G1p0")
    hook = {}
    def gelu(p):
        A = ACC1 + 16*p; T = GT; D = GD + 8*p
        for h in range(0, 16, 4):
            x0, x1 = A+h, A+h+2; t0, t1 = T, T+2
            a(f"v_pk_mul_f32 v[{t0}:{t0+1}], v[{x0}:{x0+1}], v[{x0}:{x0+1}]")
            a(f"v_pk_mul_f32 v[{t1}:{t1+1}], v[{x1}:{x1+1}], v[{x1}:{x1+1}]")
            a(f"v_pk_fma_f32 v[{t0}:{t0+1}], v[{t0}:{t0+1}], v[{vC1}:{vC1+1}], v[{vC0}:{vC0+1}]")
            a(f"v_pk_fma_f32 v[{t1}:{t1+1}], v[{t1}:{t1+1}], v[{vC1}:{vC1+1}], v[{vC0}:{vC0+1}]")
            a(f"v_pk_mul_f32 v[{t0}:{t0+1}], v[{t0}:{t0+1}], v[{x0}:{x0+1}]")
            a(f"v_pk_mul_f32 v[{t1}:{t1+1}], v[{t1}:{t1+1}], v[{x1}:{x1+1}]")
            if opt.gm[0] and not (p == 0 and h == 12 and rest and rest[0][0] == 1): restmf(1)
            for i in range(4): a(f"v_exp_f32 v{T+i}, v{T+i}")
            a(f"v_pk_add_f32 v[{t0}:{t0+1}], v[{t0}:{t0+1}], v[{vONE}:{vONE+1}]")
            a(f"v_pk_add_f32 v[{t1}:{t1+1}], v[{t1}:{t1+1}], v[{vONE}:{vONE+1}]")
            if opt.gm[1]: restmf(1)
            for i in range(4): a(f"v_rcp_f32 v{T+i}, v{T+i}")
            a(f"v_pk_mul_f32 v[{t0}:{t0+1}], v[{t0}:{t0+1}], v[{x0}:{x0+1}]")
            a(f"v_pk_mul_f32 v[{t1}:{t1+1}], v[{t1}:{t1+1}], v[{x1}:{x1+1}]")
            a(f"v_cvt_pk_bf16_f32 v{D+h//2}, v{t0}, v{t0+1}")
            a(f"v_cvt_pk_bf16_f32 v{D+h//2+1}, v{t1}, v{t1+1}")
            if h in (4, 12):
                ks = h // 8
                g.vmem(f"buffer_store_dwordx4 v[{D+4*ks}:{D+4*ks+3}], v{vST+p}, {srd(SWS)}, s{sHS+p} offen offset:{ks*1024} sc1", ("hst", p))
                if ks == 1: g.stamp(f"st{p}")
            for f in hook.get((p, h//4), []): f()
            if h == 8: assert all(r[0] != p+1 for r in rest), "next tile MFMAs must be issued one chunk ahead"
    def bar8():
        a("s_waitcnt lgkmcnt(0)"); a("s_barrier"); g.stamp("B8")
        if not opt.tagk: tagload()
    hook[tuple(opt.b8c)] = [bar8]
    hook.setdefault(tuple(opt.flag0), []).extend(([tagcheck] if not opt.tagk else []) + [lambda: hflag(0)])
    if opt.pathx: hook.setdefault(tuple(opt.poll0), []).append(lambda: fpoll(0))
    if not opt.tq: hook.setdefault(tuple(opt.pausec), []).append(lambda: a("s_barrier"))
    gelu(0)
    if opt.pad:
        a("s_branch L_pad0over")
        g.L.append(".p2align 12")
        g.lab("L_pad0")
        a("s_branch L_padret")
        g.lab("L_pad0over")
    g.stamp("gelu0")
    gelu(1); gelu(2)
    assert not rest
    g.stamp("gelu")
    NH2 = 12 if opt.nwf <= 6 else 8
    NWF = opt.nwf
    WSET = [128, 144, 160, 176, 1016, 1032, 96, 112]
    def rr(r, n): return f"v[{r}:{r+n-1}]" if r < 1000 else f"a[{r-1000}:{r-1000+n-1}]"
    def hreg(t, ks): return HL + 8*(t % NH2) + 4*ks
    def hload_parts(t):
        parts = []
        for ks in range(2):
            r = hreg(t, ks); vo = vH0x if t == 21 else vH0
            l = f"buffer_load_dwordx4 v[{r}:{r+3}], v{vo}, {srd(SWS)}, s{UT[t] if opt.utab else sUW} offen offset:{ks*1024} sc1"
            parts.append([lambda l=l, ks=ks: g.vmem(l, ("h", t, ks))])
        if t < 21 and not opt.utab:
            parts[1] += [lambda: a(f"s_add_u32 s{sUW}, s{sUW}, {6<<11}"), lambda: a(f"s_sub_u32 s{sT0}, s{sUW}, {43<<11}"), lambda: a(f"s_cselect_b32 s{sUW}, s{sUW}, s{sT0}")]
        return parts
    w2bump = [0]
    def wf(t, ks, nt): return WSET[t % NWF] + 8*ks + 4*nt
    def w2read_parts(t):
        base = w2slot(t >> 1) + (t & 1)*8192; want = base & ~0xffff
        pre = []
        if want != w2bump[0]:
            d = (want - w2bump[0]) & 0xffffffff
            pre += [lambda: a(f"v_add_u32 v{vW2a}, 0x{d:x}, v{vW2a}"), lambda: a(f"v_add_u32 v{vW2a+1}, 0x{d:x}, v{vW2a+1}")]
            w2bump[0] = want
        ops = []
        for ks in range(2):
            for nt in range(2):
                for half in range(2):
                    r = wf(t, ks, nt) + 2*half
                    ops.append(lambda r=r, nt=nt, ks=ks, half=half: g.lds(f"ds_read_b64_tr_b16 {rr(r, 2)}, v{vW2a+nt} offset:{(base & 0xffff) + (16*ks + 8*half)*128}", ("w2f", t, ks)))
        return [pre + ops[0:2], ops[2:4], ops[4:6], ops[6:8]]
    HA = opt.hahead
    WA = opt.wahead
    assert HA <= G and WA <= NWF - 1 and HA <= NH2 - 2
    def prefr(lo, hi):
        for t in range(lo, hi):
            for part in w2read_parts(t):
                for f in part: f()
    prefr(0, min(WA, 2))
    vRED = 24; vRRD = 27; TW = [12, 13, 14, 25]; TRD = 26
    a(f"v_add_u32 v{vRED}, s{sW4K}, v{vL16}"); a(f"v_xor_b32 v{vRRD}, 8192, v{vRED}")
    a(f"s_add_u32 s{sT1}, s{sW4K}, 32768")
    a(f"v_and_b32 v{vT0}, 31, v{vL}"); a(f"v_lshrrev_b32 v{vT1}, 5, v{vL}"); a(f"v_lshlrev_b32 v12, 6, v{vT0}"); a(f"v_lshl_add_u32 v12, v{vT1}, 3, v12")
    a(f"v_bfe_u32 v{vT0}, v{vL}, 1, 2"); a(f"v_lshl_add_u32 v12, v{vT0}, 4, v12"); a(f"v_add_u32 v12, s{sT1}, v12")
    for i in range(1, 4): a(f"v_xor_b32 v{TW[i]}, {16*i}, v12")
    a(f"v_bfe_u32 v{vT0}, v{vL}, 3, 2"); a(f"v_lshlrev_b32 v{vT0}, 4, v{vT0}"); a(f"v_xor_b32 v{TRD}, v{vT0}, v{vL16}"); a(f"v_add_u32 v{TRD}, s{sT1}, v{TRD}")
    hflag(1); fpoll(0); prefr(2, WA); hflag(2); g.stamp("flags")
    fgate(0); g.stamp("g0")
    for t in range(HA):
        for part in hload_parts(t):
            for f in part: f()
        if t == opt.p1pos: fpoll(1)
    g.stamp("val0")
    ne = opt.ne or (opt.pauseat - 55) // 4
    mid = set(opt.w2order[ne:]); late = set(opt.w2order[len(opt.w2order)-opt.latew:])
    bart = [2*min(mid) - WA] + ([2*min(late) - WA] if late else []) + [20 - WA - opt.lastb]
    assert bart == sorted(bart) and bart[0] >= 0 and bart[-1] >= 6, bart
    started = set([0])
    def mf2(t, ks, q):
        w = wf(t, ks, q); h = hreg(t, ks)
        c = acc2(q) if q in started else "0"
        started.add(q)
        a(f"v_mfma_f32_32x32x16_bf16 {acc2(q)}, {rr(w, 4)}, v[{h}:{h+3}], {c}")
    NT = opt.tail
    assert NT <= WA + 1 and NT <= NWF
    for t in range(22 - NT):
        fill = [[] for _ in range(4)]
        if t + HA <= 21:
            for i, part in enumerate(hload_parts(t + HA)): fill[2*i] += part
        if t + WA <= 21:
            for i, part in enumerate(w2read_parts(t + WA)): fill[i] = part + fill[i]
        if t + HA == G: fgate(1)
        if t + HA == 2*G - opt.poll2: fill[1].append(lambda: fpoll(2))
        if t + HA == 2*G: fgate(2)
        for _ in range(bart.count(t)): a("s_barrier")
        if t % 2 == 0: g.stamp(f"p{t//2}")
        n = 0
        for ks in range(2):
            g.wait2(("w2f", t, ks), ("h", t, ks))
            for q in range(2):
                mf2(t, ks, q)
                for f in fill[n]: f()
                n += 1
    g.stamp("ptail")
    def redw(i): g.lds(f"ds_write_b128 v{vRED}, a[{4*i}:{4*i+3}] offset:{16384 + i*1024}", "red")
    wt = [part for t in range(22 - NT + WA, 22) for part in w2read_parts(t)]
    for t in range(22 - NT, 22):
        for ks in range(2):
            g.wait2(("w2f", t, ks), ("h", t, ks))
            mf2(t, ks, 1)
            if wt:
                for f in wt.pop(0): f()
                for f in wt.pop(0): f()
    n = 0; pend = list(range(4))
    for t in range(22 - NT, 22):
        for ks in range(2):
            mf2(t, ks, 0); n += 1
            if n == 1: a("s_nop 7")
            elif n == 2: a("s_nop 1")
            if n >= 2 and pend: redw(pend.pop(0))
    if NT == 0: a("s_nop 7"); a("s_nop 3")
    while pend: redw(pend.pop(0))
    a("s_waitcnt lgkmcnt(0)")
    a("s_barrier")
    g.stamp("redbar")
    for i in range(4): g.lds(f"ds_read_b128 v[{48+4*i}:{51+4*i}], v{vRRD} offset:{16384 + i*1024}", ("rr", i))
    a("s_nop 5")
    for i in range(4):
        g.wait_lg(("rr", i))
        for h in (0, 2):
            d = 4*i + h
            a(f"v_pk_add_f32 v[{48+d}:{49+d}], v[{Q0+d}:{Q0+d+1}], v[{48+d}:{49+d}]")
        for h in (0, 2):
            d = 4*i + h
            a(f"v_cvt_pk_bf16_f32 v{100 + 2*i + h//2}, v{48+d}, v{49+d}")
        if opt.ost == 2: g.lds(f"ds_write_b64 v{TW[i]}, v[{100+2*i}:{101+2*i}]", "tw")
        elif i == 2:
            a("v_permlane32_swap_b32 v100, v102"); a("v_permlane32_swap_b32 v101, v103")
    a(f"s_add_u32 s{sT0}, s{sOUT}, 16384")
    if opt.ost == 2:
        g.lds(f"ds_read_b128 v[108:111], v{TRD}", "t0"); g.lds(f"ds_read_b128 v[112:115], v{TRD} offset:1024", "t1")
        g.wait_lg("t0")
        a(f"buffer_store_dwordx4 v[108:111], v{vOUTO}, {srd(SOUT)}, s{sOUT} offen {opt.outflag}")
        g.wait_lg("t1")
        a(f"buffer_store_dwordx4 v[112:115], v{vOUTO}, {srd(SOUT)}, s{sT0} offen {opt.outflag}")
    else:
        assert opt.ost == 1
        a("s_nop 0")
        a("v_permlane32_swap_b32 v104, v106"); a("v_permlane32_swap_b32 v105, v107")
        a("s_nop 0")
        for j in (0, 2, 1, 3): a(f"v_permlane16_swap_b32 v{100+j}, v{104+j}")
        a(f"buffer_store_dwordx4 v[100:103], v{vOUTO}, {srd(SOUT)}, s{sOUT} offen {opt.outflag}")
        a(f"buffer_store_dwordx4 v[104:107], v{vOUTO}, {srd(SOUT)}, s{sT0} offen {opt.outflag}")
    g.stamp("end")
    if opt.echo:
        a("s_memrealtime s[100:101]"); a("s_waitcnt lgkmcnt(0)")
        a("s_sub_u32 s96, s98, s96"); a(f"s_mul_i32 s96, s96, {opt.echok}"); a("s_add_u32 s96, s96, s100")
        g.lab("L_echo")
        a("s_sleep 1"); a("s_memrealtime s[98:99]"); a("s_waitcnt lgkmcnt(0)")
        a("s_sub_u32 s97, s98, s96"); a("s_cmp_lt_i32 s97, 0"); a("s_cbranch_scc1 L_echo")
    if opt.stamps and opt.stampwave < 4:
        a("s_waitcnt vmcnt(0)")
        g.stamp("end2")
        dump_stamps(SWS)
    g.lab("L_end")
    hdr = open("standalone__dense_activation_gelu__prompt.s.ref").read().split("\n")
    hdr = [l for l in hdr if l.startswith(";") and "@launch" not in l]
    if opt.stamps: hdr.append("; STAMPS " + " ".join(f"{n:>6s}" for n in g.stamps))
    s = "\n".join(hdr) + f"""
; @launch grid=(256,1,1) block=(512,1,1) lds=163840
.amdgcn_target "amdgcn-amd-amdhsa--gfx950"
.text
.globl {KN}
.p2align {opt.align}
.p2align 8
.type {KN},@function
{KN}:
""" + "\n".join(g.L) + f"""
    s_endpgm
.section .rodata,"a"
.p2align 6
.amdhsa_kernel {KN}
  .amdhsa_next_free_vgpr 256
  .amdhsa_next_free_sgpr 102
  .amdhsa_accum_offset 208
  .amdhsa_group_segment_fixed_size 0
  .amdhsa_kernarg_size 64
  .amdhsa_user_sgpr_count 2
  .amdhsa_user_sgpr_kernarg_segment_ptr 1
  .amdhsa_system_sgpr_workgroup_id_x 1
  .amdhsa_float_denorm_mode_32 3
.end_amdhsa_kernel
"""
    return s

def ilist(s): return [int(x) for x in s.split(",")] if s else []
def slist(s): return s.split(",")
def parser():
    ap = argparse.ArgumentParser()
    A = ap.add_argument
    A("-o", default="k.s")
    A("--stamps", type=int, default=0)
    A("--only", type=slist, default=slist("start,B0,B7,gelu0,gelu,flags,g0,val0,S0,p1,p3,p5,ptail,redbar,end2"))
    A("--onlyh", type=slist, default=slist("start,karg,B0,B1,B3,B5,B7,B8,B88,tdone,S0,S1,issued,Bg,B9"))
    A("--stampwave", type=int, default=0)
    A("--D", type=int, default=8)
    A("--bal", type=int, default=1)
    A("--touchat", type=ilist, default=ilist("13,24,35,46"))
    A("--tshift", type=int, default=0)
    A("--trows", type=int, default=11)
    A("--idleat", type=ilist, default=ilist("14,21,28,35,42,49"))
    A("--b8at", type=int, default=71)
    A("--b8c", type=ilist, default=[0, 1])
    A("--pauseat", type=int, default=75)
    A("--pausec", type=ilist, default=[2, 3])
    A("--latew", type=int, default=3)
    A("--w2order", type=ilist, default=ilist("0,1,2,4,3,5,6,7,8,9"))
    A("--tq", type=int, default=0)
    A("--syncs", type=ilist, default=ilist("27,5"))
    A("--twait", type=int, default=-1)
    A("--cap", type=int, default=0)
    A("--capfrom", type=int, default=64)
    A("--capto", type=int, default=75)
    A("--wsoff", type=int, default=0)
    A("--cpf", type=int, default=1)
    A("--align", type=int, default=12)
    A("--pad", type=int, default=0)
    A("--p2split", type=int, default=0)
    A("--abl", type=slist, default=[])
    A("--xfirst", type=int, default=0)
    A("--tlb", type=int, default=0)
    A("--w1flag", default="")
    A("--w2flag", default="")
    A("--w1from", type=int, default=0)
    A("--xfrom", type=int, default=0)
    A("--khalf", type=int, default=0)
    A("--tprep", type=int, default=12)
    A("--diag1", type=int, default=0)
    A("--D0", type=ilist, default=[])
    A("--bldk", type=int, default=-2)
    A("--ost", type=int, default=0)
    A("--defer", type=int, default=0)
    A("--deferb", type=int, default=0)
    A("--wsp", type=int, default=1)
    A("--ne", type=int, default=0)
    A("--sm", type=ilist, default=[0, 0])
    A("--smb", type=int, default=0)
    A("--smfrom", type=int, default=14)
    A("--wahead", type=int, default=2)
    A("--lastb", type=int, default=0)
    A("--G", type=int, default=7)
    A("--nwf", type=int, default=4)
    A("--utab", type=int, default=0)
    A("--tagk", type=int, default=0)
    A("--pre", type=int, default=1)
    A("--biask", type=int, default=5)
    A("--gm", type=ilist, default=[1, 1])
    A("--flag0", type=ilist, default=[2, 1])
    A("--pathx", type=int, default=0)
    A("--poll0", type=ilist, default=[2, 1])
    A("--xf", type=ilist, default=[1, 2])
    A("--p1pos", type=int, default=5)
    A("--poll2", type=int, default=4)
    A("--preflag", type=int, default=1)
    A("--hrot", type=int, default=1)
    A("--nocls", type=int, default=0)
    A("--spin", type=int, default=20000)
    A("--outflag", default="")
    A("--xflag", default="")
    A("--hahead", type=int, default=6)
    A("--hpos", type=ilist, default=ilist("0,2,4,6"))
    A("--wpos", type=ilist, default=ilist("1,3,5,7"))
    A("--d10", type=int, default=0)
    A("--tail", type=int, default=3)
    A("--echo", type=slist, default=None)
    A("--echok", type=int, default=1)
    return ap
if __name__ == "__main__":
    opt = parser().parse_args()
    open(opt.o, "w").write(gen(opt))
```

```python
import sys, argparse, struct

KN = "standalone__dense_activation_gelu__prompt_kernel"
def f32bits(x): return struct.unpack("<I", struct.pack("<f", x))[0]

class Gen:
    def __init__(self, opt):
        self.o = opt; self.L = []; self.vm = []; self.lg = []; self.stamps = {}; self.role = "c"
    def a(self, s): self.L.append("    " + s)
    def lab(self, s): self.L.append(s + ":")
    def vmem(self, s, tag): self.a(s); self.vm.append(tag)
    def lds(self, s, tag): self.a(s); self.lg.append(tag)
    def _cnt(self, lst, tags):
        idx = max(i for i, t in enumerate(lst) if t in tags)
        return len(lst) - 1 - idx
    def wait_vm(self, *tags): self.a(f"s_waitcnt vmcnt({min(self._cnt(self.vm, tags), 63)})")
    def wait_lg(self, *tags): self.a(f"s_waitcnt lgkmcnt({min(self._cnt(self.lg, tags), 15)})")
    def wait2(self, ltag, vtag):
        self.a(f"s_waitcnt vmcnt({min(self._cnt(self.vm, [vtag]), 63)}) lgkmcnt({min(self._cnt(self.lg, [ltag]), 15)})")
    def stamp(self, name):
        o = self.o
        if o.echo and name in o.echo and self.role in ("c", "both"):
            r = 96 + 2*o.echo.index(name)
            self.a(f"s_memrealtime s[{r}:{r+1}]")
        if not o.stamps: return
        want = "h" if o.stampwave >= 4 else "c"
        if self.role not in (want, "both"): return
        if name not in (o.onlyh if want == "h" else o.only): return
        r = STAMP0 + 2*len(self.stamps)
        assert r + 1 <= 101, "too many stamps"
        self.a(f"{'s_memtime' if o.stamps != 2 else 's_memrealtime'} s[{r}:{r+1}]")
        self.stamps[name] = r
        if o.stamps == 3:
            self.a(f"s_memrealtime s[{r+2}:{r+3}]"); self.stamps[name + "_r"] = r + 2

W1ROW = 2752
HUNITS = 48
FLAG_OFF = 0x600000
WS_REC = 0x700000
XBASE = 98304
OOB = 0x7ffffff0
BIG = 0x40000000

sRB1, sJL, sW, sROT = 3, 4, 5, 6
sT0, sT1, sT2 = 7, 8, 9
sW4K, sW3K, sXS, sW1S, sCNT, sOUT = 10, 11, 12, 13, 14, 15
S0, S1, S2, S3, S4 = 32, 36, 40, 44, 48
sNV, sU0, sRB2, sJ2 = 52, 53, 54, 55
sTP0 = 56; sUW = 59; sTM = 70; STAMP0 = 72
sHS = 26
def srd(b): return f"s[{b}:{b+3}]"

vL = 1
vT0, vT1, vL16, vZ = 2, 3, 4, 5
vXd, vW1d, vW2d = 8, 12, 16
vTAG, vTCH = 20, 21
vXa, vWa, vW2a = 8, 12, 6
vH0, vH1, vOUTO, vFZ = 20, 21, 22, 23
vC0, vC1, vONE = 24, 26, 28
vH0x, vH1x = 30, 31
vTG = 15
ACC1 = 32; FR = 80; LX = 128; LW = 144; BFR = 144
GT = 80; GD = 96; vST = 120
HL = 32; NHR = 6
WF = 128; NWF = 4
Q0 = 192

def gen(opt):
    g = Gen(opt); a = g.a
    g.role = "both"
    g.stamp("start")
    a("s_load_dwordx16 s[16:31], s[0:1], 0")
    a(f"s_memrealtime s[{sTM}:{sTM+1}]")
    a("s_cmp_ge_u32 s2, 256")
    a("s_cbranch_scc1 L_end")
    a(f"v_lshrrev_b32 v{vT0}, 6, v0")
    a(f"v_and_b32 v{vL}, 63, v0")
    a(f"s_and_b32 s{sT2}, s2, 1")
    a(f"v_readfirstlane_b32 s{sW}, v{vT0}")
    if opt.cpf == 4:
        a(f"s_getpc_b64 s[{S2}:{S2+1}]")
        g.lab("L_pc")
        a(f"s_lshr_b32 s{sT0}, s2, 3"); a(f"s_lshl_b32 s{sT0}, s{sT0}, 2")
        a(f"s_cmp_ge_u32 s{sW}, 4"); a("s_cbranch_scc1 L_nocpf")
        a(f"s_add_u32 s{sT0}, s{sT0}, s{sW}"); a(f"s_lshl_b32 s{sT0}, s{sT0}, 7")
        a(f"s_min_u32 s{sT0}, s{sT0}, L_end-L_pc-64")
        a(f"s_load_dword s{S3}, s[{S2}:{S2+1}], s{sT0}"); a(f"s_load_dword s{S3+1}, s[{S2}:{S2+1}], s{sT0} offset:64")
        g.lab("L_nocpf")
    a(f"s_bfe_u32 s{sJL}, s2, 0x30003")
    a(f"s_lshr_b32 s{sT0}, s2, 6")
    a(f"s_bfe_u32 s{sT1}, s2, 0x20001")
    a(f"s_lshl_b32 s{sRB1}, s{sT1}, 2"); a(f"s_add_u32 s{sRB1}, s{sRB1}, s{sT0}")
    if opt.khalf: a(f"s_add_u32 s{sROT}, s{sT0}, s{sJL}")
    else: a(f"s_lshl_b32 s{sROT}, s{sT0}, 1"); a(f"s_add_u32 s{sROT}, s{sROT}, s{sJL}")
    a(f"s_mul_i32 s{sU0}, s{sT2}, 22"); a(f"s_mul_i32 s{sT1}, s{sJL}, 3"); a(f"s_add_u32 s{sU0}, s{sU0}, s{sT1}")
    if opt.bal: a(f"s_lshr_b32 s{sT0}, s{sT0}, 1"); a(f"s_xor_b32 s{sT2}, s{sT2}, s{sT0}")
    a(f"s_xor_b32 s{sT2}, s{sT2}, 1")
    a(f"s_cmp_eq_u32 s{sJL}, 7"); a(f"s_cselect_b32 s{sNV}, s{sT2}, 3"); a(f"s_cselect_b32 s{sU0}, 21, s{sU0}")
    if not opt.p2split:
        a(f"s_and_b32 s{sRB2}, s2, 7"); a(f"s_lshl_b32 s{sRB2}, s{sRB2}, 1"); a(f"s_lshr_b32 s{sT1}, s2, 7"); a(f"s_add_u32 s{sRB2}, s{sRB2}, s{sT1}")
        a(f"s_bfe_u32 s{sJ2}, s2, 0x40003")
    elif opt.p2split == 2:
        a(f"s_bfe_u32 s{sRB2}, s2, 0x10002"); a(f"s_lshl_b32 s{sRB2}, s{sRB2}, 3"); a(f"s_lshr_b32 s{sT1}, s2, 5"); a(f"s_add_u32 s{sRB2}, s{sRB2}, s{sT1}")
        a(f"s_and_b32 s{sJ2}, s2, 3"); a(f"s_lshl_b32 s{sJ2}, s{sJ2}, 1"); a(f"s_bfe_u32 s{sT1}, s2, 0x10003"); a(f"s_or_b32 s{sJ2}, s{sJ2}, s{sT1}")
        a(f"s_bfe_u32 s{sT1}, s2, 0x10004"); a(f"s_lshl_b32 s{sT1}, s{sT1}, 3"); a(f"s_or_b32 s{sJ2}, s{sJ2}, s{sT1}")
    else:
        a(f"s_mov_b32 s{sRB2}, s{sRB1}")
        if opt.idlecov:
            a(f"s_add_u32 s{sJ2}, s{sROT}, 1"); a(f"s_and_b32 s{sJ2}, s{sJ2}, 3")
        else: a(f"s_bfe_u32 s{sJ2}, s2, 0x20003")
        a(f"s_and_b32 s{sT1}, s2, 1"); a(f"s_lshl_b32 s{sT1}, s{sT1}, 2"); a(f"s_or_b32 s{sJ2}, s{sJ2}, s{sT1}")
        a(f"s_bfe_u32 s{sT1}, s2, 0x10005"); a(f"s_lshl_b32 s{sT1}, s{sT1}, 3"); a(f"s_or_b32 s{sJ2}, s{sJ2}, s{sT1}")
    a(f"v_lshlrev_b32 v{vL16}, 4, v{vL}")
    a(f"v_mov_b32 v{vZ}, 0")
    a(f"s_mov_b32 s{sT2}, s{sW}")
    a(f"s_and_b32 s{sW}, s{sW}, 3")
    a(f"s_lshl_b32 s{sW4K}, s{sW}, 12")
    a(f"s_cmp_lt_u32 s{sT2}, 4")
    a("s_cbranch_scc1 L_compute")

    def mk(b, p, n):
        a(f"s_mov_b32 s{b}, s{p}"); a(f"s_and_b32 s{b+1}, s{p+1}, 0xffff"); a(f"s_mov_b32 s{b+2}, {n}"); a(f"s_mov_b32 s{b+3}, 0x20000")
    def units():
        a(f"s_and_b32 s{sT0}, s{sRB2}, 1"); a(f"s_lshl_b32 s{sT0}, s{sT0}, 1")
        a(f"s_lshr_b32 s{sT1}, s{sJ2}, 3"); a(f"s_add_u32 s{sT2}, s{sT0}, s{sT1}"); a(f"s_cmp_eq_u32 s{sT2}, 3"); a(f"s_cselect_b32 s{sT2}, 0, s{sT2}")
        if opt.nocls: a(f"s_mov_b32 s{sT2}, 0")
        a(f"s_mul_i32 s{sT1}, s{sW}, 3"); a(f"s_add_u32 s{sT1}, s{sT1}, s{sT2}")
        if not opt.hrot:
            a(f"s_lshl_b32 s{sUW}, s{sT1}, 15")
            for pi in range(1, 11):
                a(f"s_add_u32 s{sUW+pi}, s{sUW+pi-1}, {12<<15}"); a(f"s_sub_u32 s{sT1}, s{sUW+pi}, {43<<15}"); a(f"s_cselect_b32 s{sUW+pi}, s{sUW+pi}, s{sT1}")
        else:
            a(f"s_lshl_b32 s{sT2}, s{sT1}, 15")
            for pi in range(11):
                if pi in (4, 8): a(f"s_add_u32 s{sT2}, s{sT2}, {5<<15}")
                if pi == 10: a(f"s_add_u32 s{sUW+pi}, s{sT2}, {24<<15}")
                else:
                    a(f"s_add_u32 s{sT1}, s{sJ2}, {pi}"); a(f"s_and_b32 s{sT1}, s{sT1}, {3 if pi < 8 else 1}")
                    a(f"s_mul_i32 s{sT1}, s{sT1}, {12<<15}"); a(f"s_add_u32 s{sUW+pi}, s{sT2}, s{sT1}")
                a(f"s_sub_u32 s{sT1}, s{sUW+pi}, {43<<15}"); a(f"s_cselect_b32 s{sUW+pi}, s{sUW+pi}, s{sT1}")
    def w2voff():
        a(f"v_lshrrev_b32 v{vT0}, 3, v{vL}"); a(f"v_and_b32 v{vT1}, 7, v{vL}")
        a(f"v_lshlrev_b32 v{vW2d}, 1, v{vT0}"); a(f"v_and_b32 v{vW2d}, 4, v{vW2d}"); a(f"v_xor_b32 v{vW2d}, v{vW2d}, v{vT1}")
        a(f"v_lshlrev_b32 v{vW2d}, 4, v{vW2d}"); a(f"v_lshl_add_u32 v{vW2d}, v{vT0}, 10, v{vW2d}")
        a(f"s_and_b32 s{sT1}, s{sJ2}, 7"); a(f"s_lshl_b32 s{sT1}, s{sT1}, 7"); a(f"v_add_u32 v{vW2d}, s{sT1}, v{vW2d}")
        if "w2" in opt.abl: a(f"v_add_u32 v{vW2d}, 0x20000000, v{vW2d}")
        for q in range(1, 4): a(f"v_add_u32 v{vW2d+q}, {q*7168}, v{vW2d}")
    def w2slot(pi):
        if pi < 4: return pi*16384
        if pi < 8: return XBASE + (pi-4)*16384
        if pi < 10: return 65536 + (pi-8)*16384
        return 0
    def dump_stamps(SWS_):
        a("s_waitcnt lgkmcnt(0)")
        a(f"s_mov_b32 s{SWS_+2}, 0x10000000")
        if opt.stampwave >= 0:
            a(f"v_cmp_eq_u32 vcc, {opt.stampwave*64}, v0"); a(f"s_and_saveexec_b64 s[16:17], vcc"); a("s_cbranch_execz L_end")
            a(f"s_mul_i32 s{sT0}, s2, 128"); a(f"s_add_u32 s{sT0}, s{sT0}, 0x8000000")
        else:
            a("s_mov_b64 exec, 1")
            a(f"s_lshl_b32 s{sT0}, s2, 2"); a(f"s_add_u32 s{sT0}, s{sT0}, s{sW}"); a(f"s_mul_i32 s{sT0}, s{sT0}, 128"); a(f"s_add_u32 s{sT0}, s{sT0}, 0x8000000")
        st = list(g.stamps.values())
        a(f"s_add_u32 s18, s{st[0]}, s{sCNT}"); a(f"s_addc_u32 s19, s{st[0]+1}, 0")
        while len(st) < 15: st.append(st[0])
        st.append(18)
        for i, r in enumerate(st):
            a(f"v_mov_b32 v2, s{r}"); a(f"v_mov_b32 v3, s{r+1}")
            a(f"buffer_store_dwordx2 v[2:3], v{vZ}, {srd(SWS_)}, s{sT0} offen offset:{i*8}")
            a("s_nop 1")

    g.role = "h"; g.vm = []; g.lg = []
    SX, SW1, SW2, SWS, SDBG = S0, S1, S2, S3, S4
    a("s_setprio 1")
    a(f"s_mul_i32 s{sW3K}, s{sW}, 3072")
    a(f"s_cmp_eq_u32 s{sNV}, 0"); a(f"s_cselect_b32 s{sT2}, 0x{BIG:x}, 0")
    def w1voff():
        a(f"s_lshl_b32 s{sT1}, s{sU0}, 6"); a(f"s_mul_i32 s{sT0}, s{sW}, {16*W1ROW}"); a(f"s_add_u32 s{sT1}, s{sT1}, s{sT0}")
        a(f"s_lshl_b32 s{sT0}, s{sNV}, 2")
        a(f"v_mov_b32 v{vTCH}, 0x{BIG:x}")
        for q in range(3):
            a(f"v_add_u32 v{vT0}, {64*q}, v{vL}")
            a(f"v_mul_u32_u24 v{vT1}, 0x5556, v{vT0}"); a(f"v_lshrrev_b32 v{vT1}, 18, v{vT1}")
            a(f"v_mul_u32_u24 v{vW1d+q}, {W1ROW - 192}, v{vT1}")
            a(f"v_mul_u32_u24 v{vT1}, 12, v{vT1}"); a(f"v_sub_u32 v{vT0}, v{vT0}, v{vT1}")
            a(f"v_cmp_gt_u32 vcc, s{sT0}, v{vT0}")
            a(f"v_add3_u32 v{vW1d+q}, v{vW1d+q}, v{vL16}, s{sT1}")
            a(f"s_nop 0")
            a(f"v_cndmask_b32 v{vW1d+q}, v{vTCH}, v{vW1d+q}, vcc")
    if not opt.xfirst: w1voff()
    a(f"s_lshl_b32 s{sT1}, s{sRB1}, 17"); a(f"s_lshl_b32 s{sT0}, s{sW}, 15"); a(f"s_add_u32 s{sT1}, s{sT1}, s{sT0}"); a(f"s_add_u32 s{sT1}, s{sT1}, s{sT2}")
    a(f"v_lshrrev_b32 v{vT0}, 3, v{vL}"); a(f"v_and_b32 v{vT1}, 7, v{vL}")
    a(f"v_lshrrev_b32 v{vXd}, 1, v{vT0}"); a(f"v_xor_b32 v{vXd}, v{vXd}, v{vT1}"); a(f"v_lshlrev_b32 v{vXd}, 4, v{vXd}")
    a(f"v_lshl_add_u32 v{vXd}, v{vT0}, 10, v{vXd}"); a(f"v_add_u32 v{vXd}, s{sT1}, v{vXd}")
    a(f"v_xor_b32 v{vXd+1}, 64, v{vXd}"); a(f"v_add_u32 v{vXd+1}, {7168}, v{vXd+1}")
    a(f"v_add_u32 v{vXd+2}, {2*7168}, v{vXd}"); a(f"v_add_u32 v{vXd+3}, {2*7168}, v{vXd+1}")
    a("s_waitcnt lgkmcnt(0)")
    if "x" in opt.abl:
        for i in range(4): a(f"v_add_u32 v{vXd+i}, 0x20000000, v{vXd+i}")
    if "w1" in opt.abl:
        for i in range(3): a(f"v_add_u32 v{vW1d+i}, 0x20000000, v{vW1d+i}")
    if opt.xfirst: mk(SX, 16, 2097152)
    else: mk(SW1, 18, 1409024); mk(SX, 16, 2097152)
    g.stamp("karg")
    Q = []
    for s in range(8):
        Q += [("w", s, q) for q in range(3)] + [("x", s, p) for p in range(4)]
    if opt.xfirst: Q = Q[3:7] + Q[0:3] + Q[7:]
    for pi in opt.w2order: Q += [("2", pi, q) for q in range(4)]
    if opt.tq: Q = Q[:56] + [("t", 0, r) for r in range(opt.trows)] + Q[56:]
    pre2 = {0: 3, 1: 4, 2: 5, 3: 7, 4: 6, 5: 7, 6: 7, 7: 8, 8: 7, 9: 8}
    bars = set()
    FASTK = not opt.xfirst and opt.khalf != 2
    def kst(s):
        a(f"s_add_u32 s{sT1}, s{sROT}, {s}")
        if opt.khalf:
            a(f"s_and_b32 s{sT1}, s{sT1}, 3")
            if FASTK:
                if s == 0:
                    if opt.hsel == 0: a(f"s_and_b32 s57, s{sJL}, 4")
                    elif opt.hsel == 1: a("s_mov_b32 s57, 0")
                    elif opt.hsel == 2: a("s_lshl_b32 s57, s2, 2"); a("s_and_b32 s57, s57, 4")
                    elif opt.hsel == 3: a("s_lshl_b32 s57, s2, 1"); a("s_and_b32 s57, s57, 4")
                    elif opt.hsel == 5: a("s_lshl_b32 s57, s2, 1"); a(f"s_xor_b32 s57, s57, s{sJL}"); a("s_and_b32 s57, s57, 4")
                    elif opt.hsel == 6: a(f"s_xor_b32 s57, s2, s{sJL}"); a("s_and_b32 s57, s57, 4")
                    elif opt.hsel == 4: a("s_lshl_b32 s57, s2, 1"); a("s_xor_b32 s57, s57, s2"); a("s_lshl_b32 s57, s57, 1"); a("s_and_b32 s57, s57, 4")
                if s == 4: a("s_xor_b32 s57, s57, 4")
                a(f"s_or_b32 s{sT1}, s{sT1}, s57")
            else:
                a(f"s_and_b32 s{sT2}, s{sJL}, 4")
                if s >= 4: a(f"s_xor_b32 s{sT2}, s{sT2}, 4")
                a(f"s_or_b32 s{sT1}, s{sT1}, s{sT2}")
        else: a(f"s_and_b32 s{sT1}, s{sT1}, 7")
    def emit(it, counted=True):
        k, s, p = it
        n0 = len(g.vm)
        emit2(it)
        if not counted: del g.vm[n0:]
    def emit2(it):
        k, s, p = it
        if k == "w":
            if p == 0:
                a(f"s_add_u32 m0, s{sW3K}, {s*12288}")
                kst(s); a(f"s_mul_i32 s{sW1S}, s{sT1}, {64*W1ROW}")
                if FASTK: a(f"s_lshl_b32 s{sXS}, s{sT1}, 7")
            g.vmem(f"buffer_load_dwordx4 v{vW1d+p}, {srd(SW1)}, s{sW1S} offen offset:{p*1024} {opt.w1flag if s >= opt.w1from else ''} lds", ("w", s))
        elif k == "x":
            assert s < 4 or (s-2) in bars, it
            if p == 0:
                a(f"s_add_u32 m0, s{sW4K}, {XBASE + (s & 3)*16384}")
                if FASTK: a("s_nop 0")
                else: kst(s); a(f"s_lshl_b32 s{sXS}, s{sT1}, 7")
            g.vmem(f"buffer_load_dwordx4 v{vXd+p}, {srd(SX)}, s{sXS} offen offset:{p*1024} {opt.xflag if s >= opt.xfrom else ''} lds", ("x", s))
        elif k == "t":
            if p % 4 == 0: a(f"s_movk_i32 s25, {p*1024}")
            g.vmem(f"buffer_load_dwordx4 v[{32+4*p}:{35+4*p}], v{vTCH}, {srd(SW2)}, s25 offen offset:{(p%4)*1024}", "t")
        else:
            assert pre2[s] in bars, it
            if p == 0: a(f"s_add_u32 m0, s{sW4K}, {w2slot(s)}"); a("s_nop 0")
            g.vmem(f"buffer_load_dwordx4 v{vW2d+p}, {srd(SW2)}, s{sUW+s} offen offset:{p*1024} {opt.w2flag} lds", ("2", s))
    jobs = {}
    def at(n, f): jobs.setdefault(n, []).append(f)
    def job_srds():
        mk(SW2, 22, 1409024); mk(SDBG, 28, 256)
        if opt.stamps: mk(SWS, 30, WS_REC); a(f"s_mov_b32 s{sCNT}, 0")
    def job_tagstore():
        a(f"s_lshr_b32 s{sT1}, s2, 3"); a(f"s_and_b32 s{sT2}, s2, {3 if opt.p2split == 2 else 1}"); a(f"s_or_b32 s{sT1}, s{sT1}, s{sT2}"); a(f"s_or_b32 s{sT1}, s{sT1}, s{sW}")
        a(f"s_cselect_b32 s{sT1}, 0x{OOB:x}, 0"); a(f"v_mov_b32 v{vT0}, s{sT1}")
        a(f"s_or_b32 s{sT1}, s{sTM}, 1"); a(f"v_mov_b32 v{vTAG}, s{sT1}"); a(f"s_lshr_b32 s{sT2}, s{sRB1}, {3 if opt.p2split == 2 else 2}"); a(f"s_lshl_b32 s{sT2}, s{sT2}, 6")
        a("s_mov_b64 exec, 1")
        g.vmem(f"buffer_store_dword v{vTAG}, v{vT0}, {srd(SDBG)}, s{sT2} offen sc0 sc1", "tagst")
        a("s_mov_b64 exec, -1")
    def job_bar(s):
        def f():
            if s <= 7: g.wait_vm(("w", s), ("x", s))
            if s == 88:
                if opt.ne: g.wait_vm(("2", opt.w2order[opt.ne-1]))
                else: a("s_waitcnt vmcnt(0)")
            a("s_barrier"); bars.add(s); g.stamp(f"B{s}")
        return f
    if opt.xfirst: at(3, lambda: (mk(SW1, 18, 1409024), w1voff()))
    if opt.diag1:
        def dj():
            g.stamp("iss")
            for n in range(opt.diag1, -1, -1): a(f"s_waitcnt vmcnt({n})"); g.stamp(f"v{n}")
        at(opt.diag1, dj)
    at(9, job_srds); at(9, job_tagstore); at(10, units); at(11, w2voff); at(11, lambda: a("s_setprio 0"))
    for s in range(8): at(7*s + 6 + (opt.D0[s] if s < len(opt.D0) else opt.D), job_bar(s))
    at(opt.b8at, job_bar(8))
    if not opt.tq: at(opt.pauseat, job_bar(88))
    else:
        n0 = 56 + opt.trows
        def job_sync(i, nu):
            def f():
                g.wait_vm(("2", opt.w2order[nu-1])); a("s_barrier"); g.stamp(f"S{i}")
            return f
        for i in range(0, len(opt.syncs), 2): at(n0 + opt.syncs[i], job_sync(i//2, opt.syncs[i+1]))
    if opt.touchat or opt.tq:
        ng = max(1, len(opt.touchat))
        TR = opt.trows
        def job_tprep():
            a(f"s_lshr_b32 s{sT0}, s2, 3"); a(f"s_mul_i32 s{sT1}, s{sT0}, {4*TR}"); a(f"s_mul_i32 s{sT2}, s{sW}, {TR}"); a(f"s_add_u32 s{sT1}, s{sT1}, s{sT2}")
            a(f"s_lshl_b32 s{sT1}, s{sT1}, 10")
            if not opt.p2split: a(f"v_add_u32 v{vTCH}, s{sT1}, v{vL16}")
            elif opt.idlecov == 2:
                a(f"s_and_b32 s{sT2}, s2, 1"); a(f"s_mul_i32 s{sT2}, s{sT2}, 768"); a(f"s_add_u32 s{sT1}, s{sT1}, s{sT2}")
                a(f"v_and_b32 v{vT0}, 0x300, v{vL16}"); a(f"v_mul_u32_u24 v{vT0}, 3, v{vT0}"); a(f"v_add3_u32 v{vTCH}, s{sT1}, v{vL16}, v{vT0}")
                a(f"s_cmp_lg_u32 s{sNV}, 0"); a("s_cbranch_scc1 L_nidle")
                for q in range(4): a(f"buffer_load_dwordx4 v[{80+4*q}:{83+4*q}], v{vW2d+q}, {srd(SW2)}, s{sUW+10} offen offset:{q*1024}")
                g.lab("L_nidle")
            elif opt.p2split == 2:
                a(f"s_and_b32 s{sT2}, s2, 3"); a(f"s_lshl_b32 s{sT2}, s{sT2}, 8"); a(f"s_add_u32 s{sT1}, s{sT1}, s{sT2}")
                a(f"v_and_b32 v{vT0}, 0x300, v{vL16}"); a(f"v_mul_u32_u24 v{vT0}, 3, v{vT0}"); a(f"v_add3_u32 v{vTCH}, s{sT1}, v{vL16}, v{vT0}")
            else:
                a(f"s_and_b32 s{sT2}, s2, 1"); a(f"s_lshl_b32 s{sT2}, s{sT2}, 9"); a(f"s_add_u32 s{sT1}, s{sT1}, s{sT2}")
                a(f"v_and_b32 v{vT0}, 512, v{vL16}"); a(f"v_add3_u32 v{vTCH}, s{sT1}, v{vL16}, v{vT0}")
            if opt.sm[1] > opt.sm[0]: a(f"s_min_u32 s24, s{sT1}, {1409024 - 12288}")
            a(f"s_lshr_b32 s{sT0}, s{sT0}, {opt.tshift}"); a(f"s_and_b32 s{sOUT}, s{sT0}, {ng-1}")
        at(opt.tprep, job_tprep)
        def job_touch(gi):
            def f():
                a(f"s_cmp_lg_u32 s{sOUT}, {gi}"); a(f"s_cbranch_scc1 L_nt{gi}")
                if opt.khalf == 2:
                    for q in range(3): emit(("w", 4, q), False)
                for r in range(opt.sm[1], TR, 4 if opt.idlecov == 2 else [1, 2, 4][opt.p2split]):
                    if r >= 4 and (r % 4 == 0 or r == opt.sm[1]): a(f"s_movk_i32 s{sT0}, {(r//4)*4096}")
                    a(f"buffer_load_dwordx4 v[{32+4*r}:{35+4*r}], v{vTCH}, {srd(SW2)}, {'0' if r < 4 else f's{sT0}'} offen offset:{(r%4)*1024}")
                g.lab(f"L_nt{gi}")
            return f
        if opt.sm[1] < TR:
            for gi, n in enumerate(opt.touchat): at(n, job_touch(gi))
        if opt.sm[1] > opt.sm[0]:
            sec = [(r, c) for r in range(opt.sm[0], opt.sm[1]) for c in range(8)]
            def job_sm(n):
                def f():
                    for _ in range(n):
                        if sec:
                            r, c = sec.pop(0)
                            a(f"s_buffer_load_dword s{16 + len(sec) % 6}, {srd(SW2)}, s24 offset:{r*1024 + c*64}")
                return f
            at(opt.tprep, job_sm(opt.smb))
            for n in range(opt.smfrom, 70): at(n, job_sm(1))
        REM = 1376 - 128*TR
        if REM > 0:
            assert opt.bal
            per = -(-REM // 8)
            def job_iprep():
                a(f"s_bfe_u32 s{sT0}, s2, 0x10006"); a(f"s_lshl_b32 s{sT0}, s{sT0}, 2"); a(f"s_add_u32 s{sT0}, s{sT0}, s{sW}")
                a(f"s_mul_i32 s{sT0}, s{sT0}, {per}"); a(f"s_add_u32 s{sT0}, s{sT0}, {128*TR}"); a(f"s_lshl_b32 s24, s{sT0}, 10")
            at(12, job_iprep)
            chunks = len(opt.idleat); cs = -(-per // chunks)
            def job_idle(ci):
                def f():
                    a(f"s_cmp_lg_u32 s{sNV}, 0"); a(f"s_cbranch_scc1 L_ni{ci}")
                    for r in range(ci*cs, min(per, (ci+1)*cs)):
                        if r % 4 == 0 or r == ci*cs: a(f"s_add_u32 s{sT0}, s24, {(r//4)*4096}")
                        a(f"buffer_load_dwordx4 v[{32+4*(r%16)}:{35+4*(r%16)}], v{vL16}, {srd(SW2)}, s{sT0} offen offset:{(r%4)*1024}")
                    g.lab(f"L_ni{ci}")
                return f
            for ci, n in enumerate(opt.idleat): at(n, job_idle(ci))
    for n, it in enumerate(Q):
        if opt.cap and opt.capfrom <= n <= opt.capto: a(f"s_waitcnt vmcnt({opt.cap-1})")
        if opt.tq and n == 56 + opt.trows and opt.twait >= 0: a(f"s_waitcnt vmcnt({opt.twait})"); g.stamp("tdone")
        if not (opt.khalf == 2 and it[:2] == ("w", 4)): emit(it)
        for f in jobs.get(n, []): f()
    g.stamp("issued")
    a(f"s_cmp_eq_u32 s{sW}, 3"); a(f"s_cselect_b32 s{sT1}, 0x{BIG:x}, 0")
    for i in range(4): a(f"v_add_u32 v{vW2d+i}, s{sT1}, v{vW2d+i}")
    a(f"s_waitcnt vmcnt({4*opt.latew})"); a("s_barrier"); g.stamp("Bg")
    pre2[10] = 8
    for q in range(4): emit(("2", 10, q))
    if opt.latew:
        a("s_waitcnt vmcnt(4)"); a("s_barrier")
    a("s_waitcnt vmcnt(0)")
    a("s_barrier")
    g.stamp("B9")
    if opt.stamps and opt.stampwave >= 4: dump_stamps(SWS)
    a("s_endpgm")

    g.lab("L_compute")
    g.role = "c"; g.vm = []; g.lg = []
    SWS, SOUT, SW2, SB1, SB2 = S0, S1, S2, S3, S4
    G = opt.G
    sFS = [24, 25, 29]; sFLc = 30; sTG = 12; sTGO = 11; sFV = 16; sC3 = 31
    if opt.cpf == 1:
        a(f"s_getpc_b64 s[{S0}:{S0+1}]")
        g.lab("L_pc")
        a(f"s_lshr_b32 s{sT0}, s2, 3"); a(f"s_lshl_b32 s{sT0}, s{sT0}, 2"); a(f"s_add_u32 s{sT0}, s{sT0}, s{sW}"); a(f"s_lshl_b32 s{sT0}, s{sT0}, 7")
        a(f"s_min_u32 s{sT0}, s{sT0}, L_end-L_pc-64")
        a(f"s_load_dword s{S1}, s[{S0}:{S0+1}], s{sT0}"); a(f"s_load_dword s{S1+1}, s[{S0}:{S0+1}], s{sT0} offset:64")
    if opt.cpf == 3:
        a(f"s_getpc_b64 s[{S0}:{S0+1}]")
        g.lab("L_pc")
        a(f"s_sub_u32 s{S0}, s{S0}, L_pc-{KN}"); a(f"s_subb_u32 s{S0+1}, s{S0+1}, 0")
        a(f"s_lshr_b32 s{sT0}, s2, 3"); a(f"s_lshl_b32 s{sT0}, s{sT0}, 2"); a(f"s_add_u32 s{sT0}, s{sT0}, s{sW}"); a(f"s_lshl_b32 s{sT0}, s{sT0}, 7")
        a(f"s_min_u32 s{sT0}, s{sT0}, L_end-{KN}-64")
        a(f"s_load_dword s{S1}, s[{S0}:{S0+1}], s{sT0}"); a(f"s_load_dword s{S1+1}, s[{S0}:{S0+1}], s{sT0} offset:64")
    def cpf():
        a(f"s_getpc_b64 s[{sTM}:{sTM+1}]")
        g.lab("L_pc")
        a(f"s_lshr_b32 s{sT0}, s2, 3"); a(f"s_lshl_b32 s{sT0}, s{sT0}, 2"); a(f"s_add_u32 s{sT0}, s{sT0}, s{sW}"); a(f"s_lshl_b32 s{sT0}, s{sT0}, 7")
        a(f"s_min_u32 s{sT0}, s{sT0}, L_end-L_pc-64")
        a(f"s_load_dword s{sFV+4}, s[{sTM}:{sTM+1}], s{sT0}"); a(f"s_load_dword s{sFV+5}, s[{sTM}:{sTM+1}], s{sT0} offset:64")
    a(f"s_and_b32 s{sT0}, s{sRB1}, 1"); a(f"s_lshl_b32 s{sT0}, s{sT0}, 1")
    a(f"s_lshr_b32 s{sT1}, s{sW}, 1"); a(f"s_add_u32 s{sT0}, s{sT0}, s{sT1}"); a(f"s_cmp_eq_u32 s{sT0}, 3"); a(f"s_cselect_b32 s13, 0, s{sT0}")
    if opt.nocls: a("s_mov_b32 s13, 0")
    a(f"s_add_u32 s{sT0}, s13, 45"); a(f"s_sub_u32 s{sT0}, s{sT0}, s{sU0}")
    a(f"s_mul_i32 s{sT1}, s{sT0}, 43"); a(f"s_lshr_b32 s{sT1}, s{sT1}, 7"); a(f"s_mul_i32 s{sT1}, s{sT1}, 3"); a(f"s_sub_u32 s{sTP0}, s{sT0}, s{sT1}")
    for p in (1, 2):
        a(f"s_sub_u32 s{sTP0+p}, s{sTP0+p-1}, 1"); a(f"s_cselect_b32 s{sTP0+p}, 2, s{sTP0+p}")
    a(f"v_and_b32 v{vT0}, 31, v{vL}"); a(f"v_lshrrev_b32 v{vT1}, 5, v{vL}")
    a(f"v_lshrrev_b32 v{vXa}, 1, v{vT0}"); a(f"v_and_b32 v{vXa}, 7, v{vXa}"); a(f"v_xor_b32 v{vXa}, v{vXa}, v{vT1}"); a(f"v_lshlrev_b32 v{vXa}, 4, v{vXa}")
    a(f"v_lshl_add_u32 v{vXa}, v{vT0}, 7, v{vXa}")
    a(f"s_add_u32 s{sT1}, s{sW4K}, {XBASE}"); a(f"v_add_u32 v{vXa}, s{sT1}, v{vXa}")
    for ks in range(1, 4): a(f"v_xor_b32 v{vXa+ks}, {32*ks}, v{vXa}")
    if opt.ost == 0:
        a(f"v_lshlrev_b32 v{vOUTO}, 10, v{vT0}"); a(f"v_lshl_add_u32 v{vOUTO}, v{vT1}, 4, v{vOUTO}")
    elif opt.ost == 1:
        a(f"v_and_b32 v{vOUTO}, 15, v{vL}"); a(f"v_lshlrev_b32 v{vOUTO}, 10, v{vOUTO}"); a(f"v_lshl_add_u32 v{vOUTO}, v{vT1}, 4, v{vOUTO}")
        a(f"v_bfe_u32 v{vH0}, v{vL}, 4, 1"); a(f"v_lshl_add_u32 v{vOUTO}, v{vH0}, 5, v{vOUTO}")
    elif opt.ost == 3:
        a(f"v_lshrrev_b32 v{vOUTO}, 3, v{vL}"); a(f"v_lshlrev_b32 v{vOUTO}, 10, v{vOUTO}"); a(f"v_and_b32 v{vH0}, 7, v{vL}"); a(f"v_lshl_add_u32 v{vOUTO}, v{vH0}, 4, v{vOUTO}")
        a(f"s_and_b32 s{sT1}, s{sW}, 1"); a(f"s_mul_i32 s{sT1}, s{sT1}, {16384-64}"); a(f"v_add_u32 v{vOUTO}, s{sT1}, v{vOUTO}")
    else:
        a(f"v_lshrrev_b32 v{vOUTO}, 2, v{vL}"); a(f"v_lshlrev_b32 v{vOUTO}, 10, v{vOUTO}"); a(f"v_and_b32 v{vH0}, 3, v{vL}"); a(f"v_lshl_add_u32 v{vOUTO}, v{vH0}, 4, v{vOUTO}")
    R = vH0
    a(f"v_bfe_u32 v{vT0}, v{vL}, 4, 1"); a(f"v_lshlrev_b32 v{vT0}, 5, v{vT0}"); a(f"v_and_b32 v{R}, 3, v{vL}"); a(f"v_lshl_add_u32 v{vT0}, v{R}, 3, v{vT0}")
    a(f"v_bfe_u32 v{R}, v{vL}, 2, 2")
    a(f"v_lshl_add_u32 v{vWa}, v{vT1}, 3, v{R}"); a(f"v_mul_u32_u24 v{vWa}, 192, v{vWa}"); a(f"v_add_u32 v{vWa}, v{vWa}, v{vT0}")
    for p in (2, 1, 0):
        a(f"s_lshl_b32 s{sT1}, s{sTP0+p}, 6"); a(f"v_add_u32 v{vWa+p}, s{sT1}, v{vWa}")
    a(f"v_lshl_add_u32 v{vW2a}, v{vT1}, 2, v{R}"); a(f"v_lshl_add_u32 v{vW2a}, v{vW2a}, 7, v{vT0}")
    a(f"v_lshrrev_b32 v{R}, 1, v{R}"); a(f"s_lshr_b32 s{sT1}, s{sW}, 1"); a(f"v_xor_b32 v{R}, s{sT1}, v{R}")
    a(f"v_lshl_add_u32 v{vW2a}, v{R}, 6, v{vW2a}"); a(f"s_lshl_b32 s{sT1}, s{sT1}, 12"); a(f"v_add_u32 v{vW2a}, s{sT1}, v{vW2a}")
    a(f"v_xor_b32 v{vW2a+1}, 64, v{vW2a}")
    a(f"v_cmp_gt_u32 vcc, 32, v{vL}"); a(f"v_mov_b32 v{vT0}, 0x3f80"); a(f"v_lshlrev_b32 v{vT1}, 1, v{vL}"); a(f"v_cndmask_b32 v{BFR+16}, 0, v{vT0}, vcc")
    a(f"v_mov_b32 v{vT0}, 0x{OOB:x}"); a(f"v_cndmask_b32 v{vFZ}, v{vT0}, v{vT1}, vcc")
    for p in range(3):
        a(f"s_add_u32 s{sT1}, s{sU0}, s{sTP0+p}"); a(f"s_lshl_b32 s{sT1}, s{sT1}, 6"); a(f"v_add_u32 v{BFR+4*p}, s{sT1}, v{vFZ}")
    a(f"s_and_b32 s{sT1}, s{sJ2}, 7"); a(f"s_lshl_b32 s{sT1}, s{sT1}, 7"); a(f"s_lshr_b32 s{sT2}, s{sW}, 1"); a(f"s_lshl_b32 s{sT2}, s{sT2}, 6"); a(f"s_add_u32 s{sOUT}, s{sT1}, s{sT2}")
    a(f"v_add_u32 v{BFR+12}, s{sOUT}, v{vFZ}")
    a("s_waitcnt lgkmcnt(0)")
    mk(SB1, 20, 2752); mk(SB2, 24, 1024)
    def biasld():
        for p in range(3): g.vmem(f"buffer_load_ushort v{BFR+4*p}, v{BFR+4*p}, {srd(SB1)}, 0 offen", "b1")
        g.vmem(f"buffer_load_ushort v{BFR+12}, v{BFR+12}, {srd(SB2)}, 0 offen", "b2")
    if opt.bldk == -3: biasld()
    if opt.wsoff:
        a(f"s_add_u32 s30, s30, 0x{opt.wsoff<<20:x}"); a("s_addc_u32 s31, s31, 0")
    mk(SWS, 30, WS_REC if not opt.hrand else (8 << 20) << opt.hrand); mk(SOUT, 26, 2097152)
    a("s_mov_b64 s[0:1], s[28:29]")
    a(f"s_mov_b32 s{sC3}, s13")
    if opt.cpf == 2: cpf()
    g.stamp("karg")
    a(f"s_lshl_b32 s{sT0}, s{sRB2}, 1"); a(f"s_lshr_b32 s{sT1}, s{sJ2}, 3"); a(f"s_add_u32 s{sT0}, s{sT0}, s{sT1}"); a(f"s_lshl_b32 s{sT0}, s{sT0}, 10")
    a(f"s_lshl_b32 s{sT1}, s{sW}, 8"); a(f"s_add_u32 s{sT0}, s{sT0}, s{sT1}"); a(f"s_add_u32 s{sFLc}, s{sT0}, {FLAG_OFF}")
    if opt.preflag:
        for i in range(3): a(f"s_buffer_load_dword s{sFV+i}, {srd(SWS)}, s{sFLc} offset:{64*i} glc")
    if opt.sm[0]:
        a(f"s_lshr_b32 s{sT0}, s2, 3"); a(f"s_mul_i32 s{sT1}, s{sT0}, 44"); a(f"s_mul_i32 s{sT2}, s{sW}, 11"); a(f"s_add_u32 s{sT1}, s{sT1}, s{sT2}"); a(f"s_lshl_b32 s{sT1}, s{sT1}, 10")
        a(f"s_and_b32 s{sT2}, s2, 1"); a(f"s_lshl_b32 s{sT2}, s{sT2}, 9"); a(f"s_add_u32 s{sT1}, s{sT1}, s{sT2}")
        a(f"s_min_u32 s{sT1}, s{sT1}, {1409024 - 4096}")
        for r in range(opt.sm[0]):
            for c in range(8): a(f"s_buffer_load_dword s{19 + c % 5}, {srd(SW2)}, s{sT1} offset:{r*1024 + c*64}")
    cut = len(g.L)
    for p in range(5):
        for k in range(1, 4): a(f"v_mov_b32 v{BFR+4*p+k}, 0")
    a(f"s_lshl_b32 s{sT0}, s{sRB1}, 2"); a(f"s_add_u32 s{sT0}, s{sT0}, s{sW}"); a(f"s_mul_i32 s{sT0}, s{sT0}, {opt.hrow}")
    a(f"s_lshl_b32 s{sT1}, s{sU0}, 11"); a(f"s_add_u32 s{sT0}, s{sT0}, s{sT1}")
    for p in range(3):
        a(f"s_lshl_b32 s{sT1}, s{sTP0+p}, 11"); a(f"s_add_u32 s{sHS+p}, s{sT1}, s{sT0}")
    a(f"s_and_b32 s{sT0}, s{sRB2}, 1"); a(f"s_lshl_b32 s{sT0}, s{sT0}, 1")
    a(f"s_lshr_b32 s{sT1}, s{sJ2}, 3"); a(f"s_add_u32 s{sT2}, s{sT0}, s{sT1}"); a(f"s_cmp_eq_u32 s{sT2}, 3"); a(f"s_cselect_b32 s{sT2}, 0, s{sT2}")
    if opt.nocls: a(f"s_mov_b32 s{sT2}, 0")
    a(f"s_lshr_b32 s{sT1}, s{sW}, 1"); a(f"s_mul_i32 s{sT1}, s{sT1}, 3"); a(f"s_add_u32 s{sT1}, s{sT1}, s{sT2}"); a(f"s_lshl_b32 s{sUW}, s{sT1}, 11")
    a(f"s_lshr_b32 s{sTGO}, s{sRB1}, {3 if opt.p2split == 2 else 2}"); a(f"s_lshl_b32 s{sTGO}, s{sTGO}, 6")
    a(f"s_lshl_b32 s{sT0}, s{sRB1}, 1"); a(f"s_lshr_b32 s{sT1}, s{sW}, 1"); a(f"s_add_u32 s{sT0}, s{sT0}, s{sT1}"); a(f"s_lshl_b32 s{sT0}, s{sT0}, 10")
    a(f"s_and_b32 s{sT1}, s{sW}, 1"); a(f"s_lshl_b32 s{sT1}, s{sT1}, 8"); a(f"s_add_u32 s{sT0}, s{sT0}, s{sT1}"); a(f"s_add_u32 s{sT0}, s{sT0}, {FLAG_OFF}")
    a(f"s_sub_u32 s13, s{sU0}, s{sC3}"); a(f"s_add_u32 s13, s13, 43")
    for p in range(3):
        a(f"s_add_u32 s{sT1}, s13, s{sTP0+p}"); a(f"s_mul_i32 s{sT1}, s{sT1}, 29")
        a(f"s_mul_hi_u32 s{sT2}, s{sT1}, 99882961"); a(f"s_mul_i32 s{sT2}, s{sT2}, 43"); a(f"s_sub_u32 s{sT1}, s{sT1}, s{sT2}")
        a(f"s_cmp_lt_u32 s{sTP0+p}, s{sNV}"); a(f"s_cselect_b32 s{sT1}, s{sT1}, 64")
        a(f"s_and_b32 s{sT2}, s{sT1}, 1"); a(f"s_lshl_b32 s{sT2}, s{sT2}, 9"); a(f"s_add_u32 s{sFS[p]}, s{sT2}, s{sT0}")
        a(f"s_and_b32 s{sT2}, s{sT1}, 0x7e"); a(f"s_lshl_b32 s{sT2}, s{sT2}, 1"); a(f"s_add_u32 s{sFS[p]}, s{sFS[p]}, s{sT2}")
        a(f"s_cmp_ge_u32 s{sT1}, {2*G}"); a(f"s_cselect_b32 s{sT2}, {64-4*G}, 0"); a(f"s_add_u32 s{sFS[p]}, s{sFS[p]}, s{sT2}")
        a(f"s_cmp_ge_u32 s{sT1}, {4*G}"); a(f"s_cselect_b32 s{sT2}, {64-4*G}, 0"); a(f"s_add_u32 s{sFS[p]}, s{sFS[p]}, s{sT2}")
    if opt.bldk == -2: biasld()
    c0 = -2.0*0.7978845608028654*1.4426950408889634; c1 = c0*0.044715
    for r, v in ((vC0, f32bits(c0)), (vC1, f32bits(c1)), (vONE, 0x3f800000)):
        a(f"v_mov_b32 v{r}, 0x{v:08x}"); a(f"v_mov_b32 v{r+1}, v{r}")
    a(f"s_lshl_b32 s{sT0}, s{sRB2}, 2"); a(f"s_lshr_b32 s{sT1}, s{sJ2}, 3"); a(f"s_lshl_b32 s{sT1}, s{sT1}, 1"); a(f"s_add_u32 s{sT0}, s{sT0}, s{sT1}")
    a(f"s_and_b32 s{sT1}, s{sW}, 1"); a(f"s_add_u32 s{sT2}, s{sT0}, s{sT1}"); a(f"s_mul_i32 s{sT1}, s{sT2}, {opt.hrow}"); a(f"v_add_u32 v{vH0}, s{sT1}, v{vL16}")
    a(f"s_lshl_b32 s{sT1}, s{sT2}, 15"); a(f"s_add_u32 s{sOUT}, s{sOUT}, s{sT1}")
    a(f"s_cmp_ge_u32 s{sW}, 2"); a(f"s_cselect_b32 s{sT1}, 0x{BIG:x}, 0")
    a(f"v_add_u32 v{vH0x}, s{sT1}, v{vH0}")
    if opt.tlb:
        a("s_mov_b64 exec, 1")
        a(f"s_movk_i32 s{sT0}, 0x5c00"); a(f"s_lshl_b32 s{sT0}, s{sT0}, 2")
        if opt.tlb & 1: g.vmem(f"buffer_load_dword v{vT0}, v{vH0}, {srd(SWS)}, s{sT0} offen", "tlb")
        if opt.tlb & 2: g.vmem(f"buffer_load_dword v{vT0}, v{vZ}, {srd(SOUT)}, s{sOUT} offen", "tlb")
        if opt.tlb & 4: g.vmem(f"buffer_load_dword v{vT0}, v{vZ}, {srd(SWS)}, s{sFLc} offen offset:192", "tlb")
        a("s_mov_b64 exec, -1")
    a(f"s_mov_b32 s{sCNT}, 0")
    a(f"v_mov_b32 v{vFZ}, 0")
    UT = list(range(sUW, sUW+11)) + list(range(40, 51))
    if opt.utab:
        assert opt.defer and opt.bldk <= 2
        for t in range(1, 22):
            a(f"s_add_u32 s{UT[t]}, s{UT[t-1]}, {6<<11}"); a(f"s_sub_u32 s{sT0}, s{UT[t]}, {43<<11}"); a(f"s_cselect_b32 s{UT[t]}, s{UT[t]}, s{sT0}")
    defer = []
    if opt.defer:
        assert opt.bldk != -2 and not opt.tlb
        defer = g.L[cut:]; del g.L[cut:]
    def drip(n):
        for _ in range(n):
            if defer: g.L.append(defer.pop(0))
    def acc1(p): return f"v[{ACC1+16*p}:{ACC1+16*p+15}]"
    def acc2(q): return f"v[{Q0}:{Q0+15}]" if q == 0 else f"a[{16*(q-1)}:{16*(q-1)+15}]"
    def biasmf():
        g.wait_vm("b1", "b2")
        for p in range(3):
            a(f"v_mfma_f32_32x32x16_bf16 {acc1(p)}, v[{BFR+4*p}:{BFR+4*p+3}], v[{BFR+16}:{BFR+19}], {acc1(p)}")
        a(f"v_mfma_f32_32x32x16_bf16 {acc2(0)}, v[{BFR+12}:{BFR+15}], v[{BFR+16}:{BFR+19}], 0")
    def tagload(): a(f"s_load_dword s{sTG}, s[0:1], s{sTGO}")
    def tagcheck():
        g.lab("L_tag")
        a("s_waitcnt lgkmcnt(0)")
        a(f"s_cmp_lg_u32 s{sTG}, 0"); a("s_cbranch_scc1 L_tagok")
        a("s_sleep 8")
        a(f"s_load_dword s{sTG}, s[0:1], s{sTGO} glc")
        a(f"s_add_u32 s{sCNT}, s{sCNT}, 1"); a(f"s_cmp_lt_u32 s{sCNT}, {opt.spin}"); a("s_cbranch_scc1 L_tag")
        a("s_waitcnt lgkmcnt(0)")
        g.lab("L_tagok")
        a(f"s_mov_b32 s{sTG+1}, s{sTG}"); a(f"v_mov_b32 v{vTG}, s{sTG}")
    def hflag(p):
        if "ack" not in opt.abl: g.wait_vm(("hst", p))
        a("s_mov_b64 exec, 1")
        g.vmem(f"buffer_store_dword v{vTG}, v{vFZ}, {srd(SWS)}, s{sFS[p]} offen sc1", ("flag", p))
        a("s_mov_b64 exec, -1")
        if f"f{p}" not in g.stamps: g.stamp(f"f{p}")
    def fpoll(n):
      if "poll" not in opt.abl: a(f"s_buffer_load_dwordx8 s[{sFV}:{sFV+7}], {srd(SWS)}, s{sFLc} offset:{64*n} glc")
    def fcmp(n):
        a("s_waitcnt lgkmcnt(0)")
        cnt = G if n < 2 else 22 - 2*G
        np_ = (cnt + 1)//2
        if cnt & 1: a(f"s_mov_b32 s{sFV+cnt}, s{sTG}")
        if n == 2:
            a(f"s_cmp_ge_u32 s{sW}, 2"); a(f"s_cselect_b32 s{sFV+cnt-1}, s{sTG}, s{sFV+cnt-1}")
        for i in range(np_): a(f"s_xor_b64 s[{sFV+2*i}:{sFV+2*i+1}], s[{sFV+2*i}:{sFV+2*i+1}], s[{sTG}:{sTG+1}]")
        for i in range(1, np_): a(f"s_or_b64 s[{sFV}:{sFV+1}], s[{sFV}:{sFV+1}], s[{sFV+2*i}:{sFV+2*i+1}]")
    def fgate(n):
        g.stamp(f"a{n}")
        g.lab(f"L_fg{n}")
        fcmp(n)
        a(f"s_cbranch_scc0 L_fgok{n}" if "gate" not in opt.abl else f"s_branch L_fgok{n}")
        fpoll(n)
        a(f"s_add_u32 s{sCNT}, s{sCNT}, {1 if not opt.stamps else 10**n}"); a(f"s_cmp_lt_u32 s{sCNT}, {opt.spin}"); a(f"s_cbranch_scc1 L_fg{n}")
        a("s_waitcnt lgkmcnt(0)")
        g.lab(f"L_fgok{n}")
        if n: g.stamp(f"g{n}")
    if opt.pad:
        a("s_branch L_pad0")
        g.lab("L_padret")
    if opt.bldk == -1: biasld()
    g.stamp("ready")

    def fx(k): return FR + 16*(k % 3)
    def fw(k, p): return FR + 16*(k % 3) + 4 + 4*p
    def reads(k, regx=None, regw=None):
        s, ks = divmod(k, 4)
        out = []
        rx = fx(k) if regx is None else regx
        out.append(lambda: g.lds(f"ds_read_b128 v[{rx}:{rx+3}], v{vXa+ks} offset:{(s&3)*16384}", ("fx", k)))
        for p in range(3):
            for half in range(2):
                rw = (fw(k, p) if regw is None else regw(p)) + 2*half
                off = ((s & 3)*64 + 16*ks + 4*half)*192
                out.append(lambda rw=rw, off=off, p=p: g.lds(f"ds_read_b64_tr_b16 v[{rw}:{rw+1}], v{vWa+p} offset:{off}", ("fw", k, p)))
        return out
    def barrier(s):
        if s == 4:
            for p in range(3): a(f"v_add_u32 v{vWa+p}, {4*64*192}, v{vWa+p}")
        a("s_barrier")
        g.stamp(f"B{s}")
    def mf1(k, p, rw=None, rx=None):
        rw = fw(k, p) if rw is None else rw; rx = fx(k) if rx is None else rx
        a(f"v_mfma_f32_32x32x16_bf16 {acc1(p)}, v[{rw}:{rw+3}], v[{rx}:{rx+3}], {acc1(p) if k else 0}")
    barrier(0)
    for t in reads(0) + reads(1): t()
    NK = 28
    for k in range(NK):
        nxt = []
        if k + 2 < NK:
            if (k+2) % 4 == 0: barrier((k+2)//4)
            nxt = reads(k+2)
        g.wait_lg(("fx", k), ("fw", k, 0))
        mf1(k, 0)
        for t in nxt[:3]: t()
        drip(opt.defer - 1)
        g.wait_lg(("fw", k, 1))
        mf1(k, 1)
        for t in nxt[3:5]: t()
        drip(opt.defer)
        g.wait_lg(("fw", k, 2))
        mf1(k, 2)
        for t in nxt[5:]: t()
        drip(opt.defer)
        if k % 4 == 1: drip(opt.deferb)
        if k == opt.bldk: biasld()
        if k == opt.biask: biasmf()
        if opt.tagk and k == opt.tagk:
            assert not defer
            tagload()
    drip(1000)
    if opt.tagk: tagcheck()
    if opt.hrand:
        assert opt.tagk
        a(f"s_mul_i32 s{sT0}, s{sTG}, 0x9e3779b1"); a(f"s_lshr_b32 s{sT0}, s{sT0}, {32-opt.hrand}"); a(f"s_lshl_b32 s{sT0}, s{sT0}, 23")
        for p in range(3): a(f"s_add_u32 s{sHS+p}, s{sHS+p}, s{sT0}")
        a(f"v_add_u32 v{vH0}, s{sT0}, v{vH0}"); a(f"v_add_u32 v{vH0x}, s{sT0}, v{vH0x}")
    for p in range(3):
        a(f"s_cmp_lt_u32 s{sTP0+p}, s{sNV}"); a(f"s_cselect_b32 s{sT1}, {0 if 'hst' not in opt.abl else '2.0'}, 0x{BIG:x}"); a(f"v_add_u32 v{vST+p}, s{sT1}, v{vL16}")
    barrier(7)
    allr = {}
    for k in range(28, 32):
        allr[k] = reads(k, regx=LX + 4*(k-28), regw=lambda p, k=k: LW + 16*p + 4*(k-28))
    for k in range(28, 32):
        allr[k][0](); allr[k][1](); allr[k][2]()
    later = []
    for p in (1, 2):
        for k in range(28, 32): later += [allr[k][1+2*p], allr[k][2+2*p]]
    for k in range(28, 32):
        g.wait_lg(("fx", k), ("fw", k, 0))
        mf1(k, 0, LW + 4*(k-28), LX + 4*(k-28))
        for t in later[:4]: t()
        later = later[4:]
    rest = [(p, k) for p in (1, 2) for k in range(28, 32)]
    def restmf(n):
        for _ in range(n):
            if not rest: return
            p, k = rest.pop(0)
            g.wait_lg(("fw", k, p))
            mf1(k, p, LW + 16*p + 4*(k-28), LX + 4*(k-28))
    restmf(opt.pre); a("s_nop 5")
    g.stamp("G1p0")
    hook = {}
    held = []
    def gelu(p):
        A = ACC1 + 16*p; T = GT; D = GD + 8*p
        for h in range(0, 16, 4):
            x0, x1 = A+h, A+h+2; t0, t1 = T, T+2
            a(f"v_pk_mul_f32 v[{t0}:{t0+1}], v[{x0}:{x0+1}], v[{x0}:{x0+1}]")
            a(f"v_pk_mul_f32 v[{t1}:{t1+1}], v[{x1}:{x1+1}], v[{x1}:{x1+1}]")
            a(f"v_pk_fma_f32 v[{t0}:{t0+1}], v[{t0}:{t0+1}], v[{vC1}:{vC1+1}], v[{vC0}:{vC0+1}]")
            a(f"v_pk_fma_f32 v[{t1}:{t1+1}], v[{t1}:{t1+1}], v[{vC1}:{vC1+1}], v[{vC0}:{vC0+1}]")
            a(f"v_pk_mul_f32 v[{t0}:{t0+1}], v[{t0}:{t0+1}], v[{x0}:{x0+1}]")
            a(f"v_pk_mul_f32 v[{t1}:{t1+1}], v[{t1}:{t1+1}], v[{x1}:{x1+1}]")
            if opt.gm[0] and not (p == 0 and h == 12 and rest and rest[0][0] == 1): restmf(1)
            for i in range(4): a(f"v_exp_f32 v{T+i}, v{T+i}")
            a(f"v_pk_add_f32 v[{t0}:{t0+1}], v[{t0}:{t0+1}], v[{vONE}:{vONE+1}]")
            a(f"v_pk_add_f32 v[{t1}:{t1+1}], v[{t1}:{t1+1}], v[{vONE}:{vONE+1}]")
            if opt.gm[1]: restmf(1)
            for i in range(4): a(f"v_rcp_f32 v{T+i}, v{T+i}")
            a(f"v_pk_mul_f32 v[{t0}:{t0+1}], v[{t0}:{t0+1}], v[{x0}:{x0+1}]")
            a(f"v_pk_mul_f32 v[{t1}:{t1+1}], v[{t1}:{t1+1}], v[{x1}:{x1+1}]")
            a(f"v_cvt_pk_bf16_f32 v{D+h//2}, v{t0}, v{t0+1}")
            a(f"v_cvt_pk_bf16_f32 v{D+h//2+1}, v{t1}, v{t1+1}")
            if h in (4, 12):
                ks = h // 8
                def st(p=p, ks=ks, D=D):
                    g.vmem(f"buffer_store_dwordx4 v[{D+4*ks}:{D+4*ks+3}], v{vST+p}, {srd(SWS)}, s{sHS+p} offen offset:{ks*1024} sc1", ("hst", p))
                    if ks == 1: g.stamp(f"st{p}")
                if 2*p + ks in opt.stdelay: held.append(st)
                else: st()
            for f in hook.get((p, h//4), []): f()
            if h == 8: assert all(r[0] != p+1 for r in rest), "next tile MFMAs must be issued one chunk ahead"
    def bar8():
        a("s_waitcnt lgkmcnt(0)"); a("s_barrier"); g.stamp("B8")
        if not opt.tagk: tagload()
    hook[tuple(opt.b8c)] = [bar8]
    hook.setdefault(tuple(opt.flag0), []).extend(([tagcheck] if not opt.tagk else []) + [lambda: hflag(0)])
    if opt.pathx: hook.setdefault(tuple(opt.poll0), []).append(lambda: fpoll(0))
    if not opt.tq: hook.setdefault(tuple(opt.pausec), []).append(lambda: a("s_barrier"))
    gelu(0)
    if opt.pad:
        a("s_branch L_pad0over")
        g.L.append(".p2align 12")
        g.lab("L_pad0")
        a("s_branch L_padret")
        g.lab("L_pad0over")
    g.stamp("gelu0")
    gelu(1); gelu(2)
    assert not rest
    g.stamp("gelu")
    NH2 = 12 if opt.nwf <= 6 else 8
    NWF = opt.nwf
    WSET = [128, 144, 160, 176, 1016, 1032, 96, 112]
    def rr(r, n): return f"v[{r}:{r+n-1}]" if r < 1000 else f"a[{r-1000}:{r-1000+n-1}]"
    def hreg(t, ks): return HL + 8*(t % NH2) + 4*ks
    def hload_parts(t):
        parts = []
        for ks in range(2):
            r = hreg(t, ks); vo = vH0x if t == 21 else vH0
            l = f"buffer_load_dwordx4 v[{r}:{r+3}], v{vo}, {srd(SWS)}, s{UT[t] if opt.utab else sUW} offen offset:{ks*1024} sc1"
            parts.append([lambda l=l, ks=ks: g.vmem(l, ("h", t, ks))])
        if t < 21 and not opt.utab:
            parts[1] += [lambda: a(f"s_add_u32 s{sUW}, s{sUW}, {6<<11}"), lambda: a(f"s_sub_u32 s{sT0}, s{sUW}, {43<<11}"), lambda: a(f"s_cselect_b32 s{sUW}, s{sUW}, s{sT0}")]
        return parts
    w2bump = [0]
    def wf(t, ks, nt): return WSET[t % NWF] + 8*ks + 4*nt
    def w2read_parts(t):
        base = w2slot(t >> 1) + (t & 1)*8192; want = base & ~0xffff
        pre = []
        if want != w2bump[0]:
            d = (want - w2bump[0]) & 0xffffffff
            pre += [lambda: a(f"v_add_u32 v{vW2a}, 0x{d:x}, v{vW2a}"), lambda: a(f"v_add_u32 v{vW2a+1}, 0x{d:x}, v{vW2a+1}")]
            w2bump[0] = want
        ops = []
        for ks in range(2):
            for nt in range(2):
                for half in range(2):
                    r = wf(t, ks, nt) + 2*half
                    ops.append(lambda r=r, nt=nt, ks=ks, half=half: g.lds(f"ds_read_b64_tr_b16 {rr(r, 2)}, v{vW2a+nt} offset:{(base & 0xffff) + (16*ks + 8*half)*128}", ("w2f", t, ks)))
        return [pre + ops[0:2], ops[2:4], ops[4:6], ops[6:8]]
    HA = opt.hahead
    WA = opt.wahead
    assert HA <= G and WA <= NWF - 1 and HA <= NH2 - 2
    def prefr(lo, hi):
        for t in range(lo, hi):
            for part in w2read_parts(t):
                for f in part: f()
    prefr(0, min(WA, 2))
    vRED = 24; vRRD = 27; TW = [12, 13, 14, 25]; TRD = 26
    a(f"v_add_u32 v{vRED}, s{sW4K}, v{vL16}"); a(f"v_xor_b32 v{vRRD}, 8192, v{vRED}")
    a(f"s_add_u32 s{sT1}, s{sW4K}, 32768")
    a(f"v_and_b32 v{vT0}, 31, v{vL}"); a(f"v_lshrrev_b32 v{vT1}, 5, v{vL}"); a(f"v_lshlrev_b32 v12, 6, v{vT0}"); a(f"v_lshl_add_u32 v12, v{vT1}, 3, v12")
    a(f"v_bfe_u32 v{vT0}, v{vL}, 1, 2"); a(f"v_lshl_add_u32 v12, v{vT0}, 4, v12"); a(f"v_add_u32 v12, s{sT1}, v12")
    for i in range(1, 4): a(f"v_xor_b32 v{TW[i]}, {16*i}, v12")
    a(f"v_bfe_u32 v{vT0}, v{vL}, 3, 2"); a(f"v_lshlrev_b32 v{vT0}, 4, v{vT0}"); a(f"v_xor_b32 v{TRD}, v{vT0}, v{vL16}"); a(f"v_add_u32 v{TRD}, s{sT1}, v{TRD}")
    if not opt.stdelay:
        hflag(1); fpoll(0); prefr(2, WA); hflag(2); g.stamp("flags")
    else:
        if opt.p0early: fpoll(0)
        prefr(2, min(WA, 6))
        hflag(1)
        for f in held: f()
        if not opt.p0early: fpoll(0)
        prefr(6, WA)
        if not opt.late2: hflag(2)
    fgate(0); g.stamp("g0")
    for t in range(HA):
        for part in hload_parts(t):
            for f in part: f()
        if t == opt.p1pos: fpoll(1)
    if opt.stdelay and opt.late2: hflag(2)
    g.stamp("val0")
    ne = opt.ne or (opt.pauseat - 55) // 4
    mid = set(opt.w2order[ne:]); late = set(opt.w2order[len(opt.w2order)-opt.latew:])
    bart = [2*min(mid) - WA] + ([2*min(late) - WA] if late else []) + [20 - WA - opt.lastb]
    assert bart == sorted(bart) and bart[0] >= 0 and bart[-1] >= 6, bart
    started = set([0])
    def mf2(t, ks, q):
        w = wf(t, ks, q); h = hreg(t, ks)
        c = acc2(q) if q in started else "0"
        started.add(q)
        a(f"v_mfma_f32_32x32x16_bf16 {acc2(q)}, {rr(w, 4)}, v[{h}:{h+3}], {c}")
    NT = opt.tail
    assert NT <= WA + 1 and NT <= NWF and NT <= HA
    for t in range(22 - NT):
        fill = [[] for _ in range(4)]
        if t + HA <= 21:
            for i, part in enumerate(hload_parts(t + HA)): fill[2*i] += part
        if t + WA <= 21:
            for i, part in enumerate(w2read_parts(t + WA)): fill[i] = part + fill[i]
        if t + HA == G: fgate(1)
        if t + HA == 2*G - opt.poll2: fill[1].append(lambda: fpoll(2))
        if t + HA == 2*G: fgate(2)
        for _ in range(bart.count(t)): a("s_barrier")
        if t % 2 == 0: g.stamp(f"p{t//2}")
        n = 0
        for ks in range(2):
            g.wait2(("w2f", t, ks), ("h", t, ks))
            for q in range(2):
                mf2(t, ks, q)
                for f in fill[n]: f()
                n += 1
    g.stamp("ptail")
    def redw(i): g.lds(f"ds_write_b128 v{vRED}, a[{4*i}:{4*i+3}] offset:{16384 + i*1024}", "red")
    wt = [part for t in range(22 - NT + WA, 22) for part in w2read_parts(t)]
    for t in range(22 - NT, 22):
        for ks in range(2):
            g.wait2(("w2f", t, ks), ("h", t, ks))
            mf2(t, ks, 1)
            if wt:
                for f in wt.pop(0): f()
                for f in wt.pop(0): f()
    RR = 48
    if opt.ebar:
        live_h = {hreg(t, 0) for t in range(22 - NT, 22)}
        cand = [r for r in range(HL, HL + 8*NH2 - 8, 8) if r not in live_h and r + 8 not in live_h]
        RR = cand[0]
    def redbar():
        a("s_waitcnt lgkmcnt(0)")
        a("s_barrier")
        g.stamp("redbar")
        for i in range(4): g.lds(f"ds_read_b128 v[{RR+4*i}:{RR+3+4*i}], v{vRRD} offset:{16384 + i*1024}", ("rr", i))
    n = 0; pend = list(range(4))
    for t in range(22 - NT, 22):
        for ks in range(2):
            mf2(t, ks, 0); n += 1
            if n == 1: a("s_nop 7")
            elif n == 2: a("s_nop 1")
            if n >= 2 and pend: redw(pend.pop(0))
            if opt.ebar and n == opt.ebar:
                assert not pend
                redbar()
    if NT == 0: a("s_nop 7"); a("s_nop 3")
    while pend: redw(pend.pop(0))
    if not opt.ebar:
        redbar()
        a("s_nop 5")
    else:
        a("s_nop 7"); a("s_nop 2")
    for i in range(4):
        g.wait_lg(("rr", i))
        for h in (0, 2):
            d = 4*i + h
            a(f"v_pk_add_f32 v[{RR+d}:{RR+1+d}], v[{Q0+d}:{Q0+d+1}], v[{RR+d}:{RR+1+d}]")
        for h in (0, 2):
            d = 4*i + h
            a(f"v_cvt_pk_bf16_f32 v{100 + 2*i + h//2}, v{RR+d}, v{RR+1+d}")
        if opt.ost == 2: g.lds(f"ds_write_b64 v{TW[i]}, v[{100+2*i}:{101+2*i}]", "tw")
        elif i == 2:
            a("v_permlane32_swap_b32 v100, v102"); a("v_permlane32_swap_b32 v101, v103")
    a(f"s_add_u32 s{sT0}, s{sOUT}, 16384")
    if opt.ost == 2:
        g.lds(f"ds_read_b128 v[108:111], v{TRD}", "t0"); g.lds(f"ds_read_b128 v[112:115], v{TRD} offset:1024", "t1")
        g.wait_lg("t0")
        a(f"buffer_store_dwordx4 v[108:111], v{vOUTO}, {srd(SOUT)}, s{sOUT} offen {opt.outflag}")
        g.wait_lg("t1")
        a(f"buffer_store_dwordx4 v[112:115], v{vOUTO}, {srd(SOUT)}, s{sT0} offen {opt.outflag}")
    else:
        assert opt.ost == 1
        a("s_nop 0")
        a("v_permlane32_swap_b32 v104, v106"); a("v_permlane32_swap_b32 v105, v107")
        a("s_nop 0")
        for j in (0, 2, 1, 3): a(f"v_permlane16_swap_b32 v{100+j}, v{104+j}")
        a(f"buffer_store_dwordx4 v[100:103], v{vOUTO}, {srd(SOUT)}, s{sOUT} offen {opt.outflag}")
        a(f"buffer_store_dwordx4 v[104:107], v{vOUTO}, {srd(SOUT)}, s{sT0} offen {opt.outflag}")
    g.stamp("end")
    if opt.echo:
        a(f"s_cmp_lg_u32 s{sNV}, 3"); a("s_cbranch_scc1 L_end")
        a("s_memrealtime s[100:101]"); a("s_waitcnt lgkmcnt(0)")
        a("s_sub_u32 s96, s98, s96"); a(f"s_mul_i32 s96, s96, {opt.echok}"); a("s_add_u32 s96, s96, s100")
        g.lab("L_echo")
        a("s_sleep 1"); a("s_memrealtime s[98:99]"); a("s_waitcnt lgkmcnt(0)")
        a("s_sub_u32 s97, s98, s96"); a("s_cmp_lt_i32 s97, 0"); a("s_cbranch_scc1 L_echo")
    if opt.stamps and opt.stampwave < 4:
        a("s_waitcnt vmcnt(0)")
        g.stamp("end2")
        dump_stamps(SWS)
    g.lab("L_end")
    hdr = open("standalone__dense_activation_gelu__prompt.s.ref").read().split("\n")
    hdr = [l for l in hdr if l.startswith(";") and "@launch" not in l]
    if opt.stamps: hdr.append("; STAMPS " + " ".join(f"{n:>6s}" for n in g.stamps))
    s = "\n".join(hdr) + f"""
; @launch grid=(256,1,1) block=(512,1,1) lds=163840
.amdgcn_target "amdgcn-amd-amdhsa--gfx950"
.text
.globl {KN}
.p2align {opt.align}
.p2align 8
.type {KN},@function
{KN}:
""" + "\n".join(g.L) + f"""
    s_endpgm
.section .rodata,"a"
.p2align 6
.amdhsa_kernel {KN}
  .amdhsa_next_free_vgpr 256
  .amdhsa_next_free_sgpr 102
  .amdhsa_accum_offset 208
  .amdhsa_group_segment_fixed_size 0
  .amdhsa_kernarg_size 64
  .amdhsa_user_sgpr_count 2
  .amdhsa_user_sgpr_kernarg_segment_ptr 1
  .amdhsa_system_sgpr_workgroup_id_x 1
  .amdhsa_float_denorm_mode_32 3
.end_amdhsa_kernel
"""
    return s

def ilist(s): return [int(x) for x in s.split(",")] if s else []
def slist(s): return s.split(",")
def parser():
    ap = argparse.ArgumentParser()
    A = ap.add_argument
    A("-o", default="k.s")
    A("--stamps", type=int, default=0)
    A("--only", type=slist, default=slist("start,B0,B7,gelu0,gelu,flags,g0,val0,S0,p1,p3,p5,ptail,redbar,end2"))
    A("--onlyh", type=slist, default=slist("start,karg,B0,B1,B3,B5,B7,B8,B88,tdone,S0,S1,issued,Bg,B9"))
    A("--stampwave", type=int, default=0)
    A("--D", type=int, default=8)
    A("--bal", type=int, default=1)
    A("--touchat", type=ilist, default=ilist("13,24,35,46"))
    A("--tshift", type=int, default=0)
    A("--trows", type=int, default=11)
    A("--idleat", type=ilist, default=ilist("14,21,28,35,42,49"))
    A("--b8at", type=int, default=71)
    A("--b8c", type=ilist, default=[0, 1])
    A("--pauseat", type=int, default=75)
    A("--pausec", type=ilist, default=[2, 3])
    A("--latew", type=int, default=3)
    A("--w2order", type=ilist, default=ilist("0,1,2,4,3,5,6,7,8,9"))
    A("--tq", type=int, default=0)
    A("--syncs", type=ilist, default=ilist("27,5"))
    A("--twait", type=int, default=-1)
    A("--cap", type=int, default=0)
    A("--capfrom", type=int, default=64)
    A("--capto", type=int, default=75)
    A("--wsoff", type=int, default=0)
    A("--cpf", type=int, default=1)
    A("--align", type=int, default=12)
    A("--pad", type=int, default=0)
    A("--p2split", type=int, default=0)
    A("--abl", type=slist, default=[])
    A("--xfirst", type=int, default=0)
    A("--tlb", type=int, default=0)
    A("--w1flag", default="")
    A("--w2flag", default="")
    A("--w1from", type=int, default=0)
    A("--xfrom", type=int, default=0)
    A("--khalf", type=int, default=0)
    A("--tprep", type=int, default=12)
    A("--diag1", type=int, default=0)
    A("--D0", type=ilist, default=[])
    A("--bldk", type=int, default=-2)
    A("--ost", type=int, default=0)
    A("--defer", type=int, default=0)
    A("--deferb", type=int, default=0)
    A("--wsp", type=int, default=1)
    A("--ne", type=int, default=0)
    A("--sm", type=ilist, default=[0, 0])
    A("--smb", type=int, default=0)
    A("--smfrom", type=int, default=14)
    A("--wahead", type=int, default=2)
    A("--lastb", type=int, default=0)
    A("--G", type=int, default=7)
    A("--nwf", type=int, default=4)
    A("--utab", type=int, default=0)
    A("--tagk", type=int, default=0)
    A("--pre", type=int, default=1)
    A("--hrow", type=int, default=98304)
    A("--ebar", type=int, default=0)
    A("--hrand", type=int, default=0)
    A("--idlecov", type=int, default=0)
    A("--hsel", type=int, default=0)
    A("--stdelay", type=ilist, default=[])
    A("--late2", type=int, default=1)
    A("--p0early", type=int, default=1)
    A("--biask", type=int, default=5)
    A("--gm", type=ilist, default=[1, 1])
    A("--flag0", type=ilist, default=[2, 1])
    A("--pathx", type=int, default=0)
    A("--poll0", type=ilist, default=[2, 1])
    A("--xf", type=ilist, default=[1, 2])
    A("--p1pos", type=int, default=5)
    A("--poll2", type=int, default=4)
    A("--preflag", type=int, default=1)
    A("--hrot", type=int, default=1)
    A("--nocls", type=int, default=0)
    A("--spin", type=int, default=20000)
    A("--outflag", default="")
    A("--xflag", default="")
    A("--hahead", type=int, default=6)
    A("--hpos", type=ilist, default=ilist("0,2,4,6"))
    A("--wpos", type=ilist, default=ilist("1,3,5,7"))
    A("--d10", type=int, default=0)
    A("--tail", type=int, default=3)
    A("--echo", type=slist, default=None)
    A("--echok", type=int, default=1)
    return ap
if __name__ == "__main__":
    opt = parser().parse_args()
    open(opt.o, "w").write(gen(opt))
```
